```python
import torch

def _softmax(x, axis=-1):
    return torch.softmax(x, dim=axis)
def _gelu(x):
    return torch.nn.functional.gelu(x, approximate="tanh")
def _silu(x):
    return torch.nn.functional.silu(x)
def _sigmoid(x):
    return torch.sigmoid(x)
def _layernorm(x, axis=-1, eps=1e-5):
    m = x.mean(dim=axis, keepdim=True)
    v = x.var(dim=axis, keepdim=True, unbiased=False)
    return (x - m) / torch.sqrt(v + eps)
def _scatter_add(tgt, idx, src, axis=0):
    return tgt.clone().index_add_(axis, idx, src)
def _segment_sum(src, seg, n):
    out = torch.zeros((n,) + src.shape[1:], dtype=src.dtype)
    return out.index_add_(0, seg, src)
def _pad(x, pw):
    flat = tuple(v for pair in reversed(pw) for v in pair)
    return torch.nn.functional.pad(x, flat)

kernel_name = 'parallel_sum__gqa_block_cached__swiglu_ffn__decode'

def setup_inputs():

    _w = (lambda a: (lambda t: t.to(torch.bfloat16) if t.is_floating_point() else t)(torch.as_tensor(a)))
    def _A_setup():
        B, Sq, D = 2, 1, 576
        Hq, Hkv, Sk, Dh = 32, 16, 32768, 128
        assert Hq % Hkv == 0, (Hq, Hkv)
        return {
            "x": _w((lambda *s: torch.randn(*s, dtype=torch.bfloat16) * 0.05)(B, Sq, D)),
            "k_cache": _w((lambda *s: torch.randn(*s, dtype=torch.bfloat16) * 3.2)(B, Hkv, Sk, Dh)),
            "v_cache": _w((lambda *s: torch.randn(*s, dtype=torch.bfloat16) * 1.6)(B, Hkv, Sk, Dh)),
            "wq": _w((lambda *s: torch.randn(*s, dtype=torch.bfloat16) * 3.2)(D, Hq * Dh) * (D ** -0.5)),
            "wo": _w((lambda *s: torch.randn(*s, dtype=torch.bfloat16) * 1.6)(Hq * Dh, D) * ((Hq * Dh) ** -0.5)),
        }
    _A_in = _A_setup()

    def _B_setup():
        B, S, D, F = 2, 1, 576, 4608
        return {
            "x": _w((lambda *s: torch.randn(*s, dtype=torch.bfloat16) * 0.05)(B, S, D)),
            "w_gate": _w((lambda *s: torch.randn(*s, dtype=torch.bfloat16) * 0.05)(D, F)),
            "w_up": _w((lambda *s: torch.randn(*s, dtype=torch.bfloat16) * 0.05)(D, F)),
            "w_down": _w((lambda *s: torch.randn(*s, dtype=torch.bfloat16) * 0.05)(F, D)),
        }
    _B_in = _B_setup()

    return {
        "A_x": _A_in["x"],
        "A_k_cache": _A_in["k_cache"],
        "A_v_cache": _A_in["v_cache"],
        "A_wq": _A_in["wq"],
        "A_wo": _A_in["wo"],
        "B_x": _B_in["x"],
        "B_w_gate": _B_in["w_gate"],
        "B_w_up": _B_in["w_up"],
        "B_w_down": _B_in["w_down"],
    }

def reference(A_x, A_k_cache, A_v_cache, A_wq, A_wo, B_x, B_w_gate, B_w_up, B_w_down):
    def _A_ref(x, k_cache, v_cache, wq, wo):
        B, Sq, D = x.shape
        Hq, Dh = 32, 128
        Hkv = k_cache.shape[1]
        rep = Hq // Hkv
        q = (lambda x, *d: x.permute(*d))((x @ wq).reshape(B, Sq, Hq, Dh), 0, 2, 1, 3)
        k = (lambda x, n, axis: torch.repeat_interleave(x, n, dim=axis))(k_cache, rep, axis=1)
        v = (lambda x, n, axis: torch.repeat_interleave(x, n, dim=axis))(v_cache, rep, axis=1)
        scores = torch.einsum("bhqd,bhkd->bhqk", q, k) * (Dh ** -0.5)
        p = _softmax(scores, axis=-1)
        o = torch.einsum("bhqk,bhkd->bhqd", p, v)
        return (lambda x, *d: x.permute(*d))(o, 0, 2, 1, 3).reshape(B, Sq, Hq * Dh) @ wo

    def _B_ref(x, w_gate, w_up, w_down):
        g = _silu(x @ w_gate)
        u = x @ w_up
        return (g * u) @ w_down

    x = A_x
    xn = _layernorm(x, axis=-1)
    return x + _A_ref(xn, A_k_cache, A_v_cache, A_wq, A_wo) + _B_ref(xn, B_w_gate, B_w_up, B_w_down)
```

```python
import re

TRANS = ("v_exp_f32", "v_log_f32", "v_rcp_f32", "v_rsq_f32", "v_sqrt_f32", "v_sin_f32", "v_cos_f32")

def regs_of(tok):
    tok = tok.strip()
    neg = tok.lstrip("-")
    m = re.fullmatch(r"\|?([vsa])(\d+)\|?", neg)
    if m: return [(m.group(1), int(m.group(2)))]
    m = re.fullmatch(r"([vsa])\[(\d+):(\d+)\]", neg)
    if m: return [(m.group(1), i) for i in range(int(m.group(2)), int(m.group(3)) + 1)]
    if neg == "vcc": return [("s", 106), ("s", 107)]
    if neg == "exec": return [("s", 126), ("s", 127)]
    if neg == "m0": return [("s", 124)]
    return []

class Asm:
    def __init__(self):
        self.lines = []
        self.slot = 0
        self.last = {}
        self.maxv = 0
        self.maxs = 0

    def raw(self, s):
        self.lines.append(s)

    def comment(self, s):
        self.lines.append("    ; " + s)

    def label(self, name):
        self.lines.append(name + ":")

    def fence(self, n=8):
        need = 0
        req = {"valu_v": 2, "valu_s": 5, "trans": 1, "mfma_d": 8, "mfma_c": 3, "store_d": 2}
        for (kind, r), sl in self.last.items():
            need = max(need, req[kind] - (self.slot - sl - 1))
        if need > 0: self._nop(need)

    def _nop(self, n):
        while n > 0:
            k = min(n, 16)
            self.lines.append(f"    s_nop {k-1}")
            self.slot += k
            n -= k

    def __call__(self, text):
        for ins in text.split("\n"):
            ins = ins.strip()
            if ins: self.ins(ins)

    def ins(self, ins):
        code = ins.split(";")[0].strip()
        parts = code.split(None, 1)
        op = parts[0]
        rest = parts[1] if len(parts) > 1 else ""
        ops, depth, cur = [], 0, ""
        for ch in rest:
            if ch == "[": depth += 1
            if ch == "]": depth -= 1
            if ch == "," and depth == 0:
                ops.append(cur.strip()); cur = ""
            else: cur += ch
        if cur.strip(): ops.append(cur.strip())
        mods = ""
        if ops:
            sp = ops[-1].split(None, 1)
            ops[-1] = sp[0]
            mods = sp[1] if len(sp) > 1 else ""
        R = [regs_of(o) for o in ops]
        for rl in R:
            for (k, n) in rl:
                if k == "v": self.maxv = max(self.maxv, n)
                if k == "s" and n < 102: self.maxs = max(self.maxs, n)
        is_mfma = op.startswith("v_mfma")
        is_valu = op.startswith("v_") and not is_mfma
        is_vmem = op.startswith(("buffer_", "global_", "flat_"))
        is_ds = op.startswith("ds_")
        is_dpp = "_dpp" in op or "quad_perm" in mods or "row_" in mods
        writes, reads = [], []
        if is_mfma:
            writes = R[0]; reads = R[1] + R[2] + R[3]
        elif is_valu:
            if op.startswith("v_cmp"):
                writes = R[0]; reads = sum(R[1:], [])
            elif op.startswith("v_permlane") and "swap" in op:
                writes = R[0] + R[1]; reads = R[0] + R[1]
            elif op.startswith(("v_add_co", "v_sub_co", "v_addc_co")):
                writes = R[0] + R[1]; reads = sum(R[2:], [])
            else:
                writes = R[0]; reads = sum(R[1:], [])
                if op.startswith(("v_fmac", "v_dot2c")) or is_dpp: reads = reads + R[0]
        elif is_vmem:
            if "_load" in op:
                writes = R[0]; reads = sum(R[1:], [])
            elif "atomic" in op and "sc0" in mods:
                if op.startswith("global"):
                    writes = R[0]; reads = sum(R[1:], [])
                else:
                    writes = R[0]; reads = sum(R, [])
            else:
                reads = sum(R, [])
        elif is_ds:
            if op.startswith(("ds_read", "ds_bpermute", "ds_swizzle")) or "_rtn" in op:
                writes = R[0]; reads = sum(R[1:], [])
            else:
                reads = sum(R, [])
        need = 0
        def chk(kind, reg, ws):
            nonlocal need
            sl = self.last.get((kind, reg))
            if sl is not None:
                need = max(need, ws - (self.slot - sl - 1))
        if is_valu:
            for r in reads:
                if r[0] == "v":
                    if is_dpp or op.startswith("v_permlane"): chk("valu_v", r, 2)
                    if op.startswith(("v_readlane", "v_readfirstlane")): chk("valu_v", r, 1)
                    if not op.startswith(TRANS): chk("trans", r, 1)
                    chk("mfma_d", r, 8)
                else:
                    chk("valu_s", r, 4 if op.startswith(("v_readlane", "v_writelane")) else 2)
            if op.startswith("v_cndmask") and len(ops) == 3:
                chk("valu_s", ("s", 106), 2)
            for r in writes:
                if r[0] == "v":
                    chk("mfma_d", r, 8); chk("mfma_c", r, 3); chk("store_d", r, 2)
        if is_mfma:
            for r in R[1] + R[2]:
                chk("valu_v", r, 2); chk("mfma_d", r, 8)
            for r in R[3]:
                chk("valu_v", r, 2)
            if R[3] and R[3] != R[0]:
                for r in R[3]: chk("mfma_d", r, 6)
            if R[3] != R[0]:
                for r in R[0]: chk("mfma_d", r, 6)
        if is_vmem or is_ds:
            for r in reads:
                if r[0] == "v": chk("mfma_d", r, 8)
                else: chk("valu_s", r, 5)
            for r in writes:
                chk("mfma_d", r, 8); chk("store_d", r, 1)
        if need > 0: self._nop(need)
        self.lines.append("    " + ins)
        me = self.slot
        if op == "s_nop":
            self.slot += int(ops[0]) + 1
        else:
            self.slot += 1
        if is_valu:
            for r in writes:
                if r[0] == "v":
                    self.last[("valu_v", r)] = me
                    if op.startswith(TRANS): self.last[("trans", r)] = me
                    else: self.last.pop(("trans", r), None)
                else:
                    self.last[("valu_s", r)] = me
        if is_mfma:
            for r in writes: self.last[("mfma_d", r)] = me
            for r in R[3]: self.last[("mfma_c", r)] = me
        if (is_vmem or is_ds) and ("x4" in op or "x3" in op or "b128" in op or "b96" in op) and ("store" in op or "write" in op):
            data = R[0] if op.startswith("buffer_") else R[1]
            for r in data: self.last[("store_d", r)] = me
        if op.startswith("s_") and ops and not op.startswith(("s_cmp", "s_cbranch", "s_branch", "s_waitcnt", "s_nop", "s_sleep", "s_setprio", "s_barrier")):
            for r in R[0]: self.last.pop(("valu_s", r), None)

    def text(self):
        return "\n".join(self.lines) + "\n"
```

```python
import struct, sys
from asmlib import Asm

NAME = "parallel_sum__gqa_block_cached__swiglu_ffn__decode"
def f2u(x): return struct.unpack("<I", struct.pack("<f", x))[0]
SCALE = f2u(128 ** -0.5)
LOG2E = f2u(1.4426950408889634)

WS_TICK = 0x000000
WS_QP   = 0x100000
WS_GP   = 0x200000
WS_S1   = 0x300000
WS_S2   = 0x400000
WS_S3   = 0x500000
WS_SIZE = 0x600000
L_TAB = 0x0000; L_CNT = 0x0400; L_FLAG = 0x0404
L_XD = 0x0800; L_QL = 0x1A00; L_HD = 0x1C00; L_OD = 0x2400; L_PML = 0x2800; L_PART = 0x3000
LDS_SIZE = 0x5000

class Cfg:
    NSW = 6
    NS = 6
    NSTAT = 24
    LOOK = 8
    POL = "nt"
    WPOL = "nt"

S_WAVE, S_C, S_B, S_J, S_G = "s3", "s4", "s5", "s6", "s7"
P_X, P_K, P_V, P_WQ, P_WO, P_WG, P_WU, P_WD, P_OUT, P_DBG, P_WS = 16, 18, 20, 22, 24, 28, 30, 32, 34, 36, 38
R_W, R_WS, R_K, R_V, R_X = 40, 44, 48, 52, 56
S_R, S_S = "s8", "s9"
S_SCALE, S_LOG2E = "s10", "s11"

def srd(a, r, p, nbytes):
    a(f"s_mov_b32 s{r}, s{p}"); a(f"s_mov_b32 s{r+1}, s{p+1}")
    a(f"s_mov_b32 s{r+2}, {nbytes:#x}"); a(f"s_mov_b32 s{r+3}, 0x20000")
def q(r): return f"s[{r}:{r+3}]"
def v4(r): return f"v[{r}:{r+3}]"
def v2(r): return f"v[{r}:{r+1}]"

def prologue(a, endlabel):
    a("s_load_dwordx16 s[16:31], s[0:1], 0")
    a("s_load_dwordx8 s[32:39], s[0:1], 64")
    a("s_cmp_ge_u32 s2, 256")
    a(f"s_cbranch_scc1 {endlabel}")
    a("v_lshrrev_b32 v6, 6, v0")
    a("v_and_b32 v1, 63, v0")
    a(f"v_readfirstlane_b32 {S_WAVE}, v6")
    a(f"s_lshr_b32 {S_G}, s2, 3")
    a(f"s_lshr_b32 {S_C}, s2, 4")
    a(f"s_and_b32 {S_B}, {S_G}, 1")
    a(f"s_and_b32 {S_J}, s2, 7")
    a(f"s_and_b32 {S_S}, {S_G}, 7")
    a(f"s_lshr_b32 {S_R}, {S_G}, 3")
    a(f"s_lshl_b32 s60, {S_J}, 2")
    a(f"s_add_u32 {S_R}, {S_R}, s60")
    a(f"s_mov_b32 {S_SCALE}, {SCALE:#x}")
    a(f"s_mov_b32 {S_LOG2E}, {LOG2E:#x}")
    a("v_and_b32 v6, 1, v1")
    a("v_lshlrev_b32 v6, 4, v6")
    a("v_mov_b32 v7, 0xffff")
    a("v_lshlrev_b32 v6, v6, v7")
    a("v_bfe_u32 v7, v1, 1, 2")
    for j in range(4):
        a(f"v_cmp_eq_u32 vcc, {j}, v7")
        a(f"v_cndmask_b32 v{2+j}, 0, v6, vcc")
    a("s_waitcnt lgkmcnt(0)")
    srd(a, R_WS, P_WS, WS_SIZE)

def rowsum32(a, x, t):
    a(f"v_add_f32_dpp v{x}, v{x}, v{x} quad_perm:[1,0,3,2] row_mask:0xf bank_mask:0xf")
    a(f"v_add_f32_dpp v{x}, v{x}, v{x} quad_perm:[2,3,0,1] row_mask:0xf bank_mask:0xf")
    a(f"v_add_f32_dpp v{x}, v{x}, v{x} row_half_mirror row_mask:0xf bank_mask:0xf")
    a(f"v_add_f32_dpp v{x}, v{x}, v{x} row_mirror row_mask:0xf bank_mask:0xf")
    a(f"v_mov_b32 v{t}, v{x}")
    a(f"v_permlane16_swap_b32 v{t}, v{x}")
    a(f"v_add_f32 v{x}, v{x}, v{t}")

def rne(a, x):
    a(f"v_cvt_pk_bf16_f32 v{x}, v{x}, v{x}")
    a(f"v_and_b32 v{x}, 0xffff0000, v{x}")

def ln_load(a, xr):
    srd(a, R_X, P_X, 2304)
    a("v_lshrrev_b32 v6, 5, v1")
    a("v_mul_u32_u24 v6, 1152, v6")
    a("v_and_b32 v7, 31, v1")
    a("v_lshl_add_u32 v6, v7, 2, v6")
    for k in range(9):
        a(f"buffer_load_dword v{xr+k}, v6, {q(R_X)}, 0 offen offset:{128*k}")

def ln_compute(a, xr, e):
    for k in range(9):
        a(f"v_lshlrev_b32 v{e+2*k}, 16, v{xr+k}")
        a(f"v_and_b32 v{e+2*k+1}, 0xffff0000, v{xr+k}")
    a(f"v_add_f32 v8, v{e}, v{e+1}")
    a(f"v_add_f32 v9, v{e+2}, v{e+3}")
    for k in range(4, 18, 2):
        a(f"v_add_f32 v8, v8, v{e+k}")
        a(f"v_add_f32 v9, v9, v{e+k+1}")
    a("v_add_f32 v8, v8, v9")
    rowsum32(a, 8, 9)
    a(f"v_mul_f32 v8, {f2u(1.0/576):#x}, v8")
    a("v_mov_b32 v10, 0"); a("v_mov_b32 v11, 0")
    for k in range(0, 18, 2):
        a(f"v_sub_f32 v12, v{e+k}, v8")
        a(f"v_sub_f32 v13, v{e+k+1}, v8")
        a("v_fmac_f32 v10, v12, v12")
        a("v_fmac_f32 v11, v13, v13")
    a("v_add_f32 v10, v10, v11")
    rowsum32(a, 10, 9)
    a(f"v_mul_f32 v10, {f2u(1.0/576):#x}, v10")
    rne(a, 8); rne(a, 10)
    a(f"v_add_f32 v10, {f2u(1e-5):#x}, v10")
    rne(a, 10)
    a("v_sqrt_f32 v10, v10")
    rne(a, 10)
    a("v_rcp_f32 v10, v10")
    a("v_lshrrev_b32 v6, 5, v1")
    a("v_mul_u32_u24 v6, 2304, v6")
    a("v_and_b32 v7, 31, v1")
    a("v_lshl_add_u32 v6, v7, 3, v6")
    for k in range(18):
        a(f"v_sub_f32 v{e+k}, v{e+k}, v8")
    for k in range(18):
        rne(a, e + k)
    for k in range(18):
        a(f"v_mul_f32 v{e+k}, v{e+k}, v10")
    for k in range(18):
        a(f"v_cvt_pk_bf16_f32 v{e+k}, v{e+k}, v{e+k}")
    for k in range(9):
        a(f"ds_write_b64 v6, {v2(e+2*k)} offset:{L_XD + 256*k}")
    a("s_waitcnt lgkmcnt(0)")

def w_voff(a, vo, rpk, rs):
    a(f"v_lshrrev_b32 v{vo}, 4, v1")
    a(f"s_mov_b32 s60, {rpk*rs}")
    a(f"v_mul_lo_u32 v{vo}, v{vo}, s60")
    a("v_and_b32 v7, 15, v1")
    a(f"v_lshl_add_u32 v{vo}, v7, 4, v{vo}")

def w_loads(a, cfg, vo, sbase, rs, i0, n, wr):
    per = 4095 // rs + 1
    cur = None
    for k in range(n):
        i = i0 + k
        grp = i // per
        if grp != cur:
            a(f"s_add_u32 s61, {sbase}, {grp*per*rs}")
            cur = grp
        a(f"buffer_load_dwordx4 {v4(wr+4*k)}, v{vo}, {q(R_W)}, s61 offen offset:{(i%per)*rs} {cfg.WPOL}")

def a_addr(a, va, rowlen, rpk):
    a(f"v_bfe_u32 v{va}, v1, 3, 1")
    a(f"v_mul_u32_u24 v{va}, {rowlen*4}, v{va}")
    a("v_lshrrev_b32 v7, 4, v1")
    a(f"v_mul_u32_u24 v7, {rpk*4}, v7")
    a(f"v_add_u32 v{va}, v{va}, v7")

def gemv_mfma(a, xv, wr, n, acc, first, A0=20):
    def mk(k):
        q_ = A0 + 4 * (k & 1)
        for j in range(4):
            a(f"v_and_b32 v{q_+j}, v{xv+k}, v{2+j}")
    mk(0)
    for k in range(n):
        if k + 1 < n: mk(k + 1)
        c = "0" if (first and k == 0) else v4(acc)
        a(f"v_mfma_f32_16x16x32_bf16 {v4(acc)}, {v4(A0+4*(k&1))}, {v4(wr+4*k)}, {c}")

def d_off(a, vo, bstride):
    a(f"v_lshrrev_b32 v{vo}, 5, v1")
    a(f"s_mov_b32 s60, {bstride}")
    a(f"v_mul_lo_u32 v{vo}, v{vo}, s60")
    a("v_and_b32 v7, 15, v1")
    a(f"v_lshl_add_u32 v{vo}, v7, 5, v{vo}")
    a("v_bfe_u32 v7, v1, 4, 1")
    a(f"v_lshl_add_u32 v{vo}, v7, 4, v{vo}")

EXEC9 = ("0x01ff01ff", "0x01ff01ff")
def exec9(a):
    a("s_mov_b32 exec_lo, 0x01ff01ff"); a("s_mov_b32 exec_hi, 0x01ff01ff")
def execall(a): a("s_mov_b64 exec, -1")

XV = 28
WR = 76
ACC = 16

def qproj_issue(a, cfg):
    srd(a, R_W, P_WQ, 4718592)
    w_voff(a, 14, 18, 8192)
    a(f"s_mul_i32 s62, {S_J}, {72*8192}")
    a(f"s_lshl_b32 s63, {S_G}, 8")
    a("s_add_u32 s62, s62, s63")
    w_loads(a, cfg, 14, "s62", 8192, 0, 18, WR)

def qproj_compute(a, cfg):
    a_addr(a, 15, 576, 18)
    a(f"s_mul_i32 s62, {S_J}, {72*4}")
    a("v_add_u32 v15, s62, v15")
    for k in range(9):
        a(f"ds_read_b64 {v2(XV+2*k)}, v15 offset:{L_XD + 8*k}")
    a("s_waitcnt vmcnt(0) lgkmcnt(0)")
    gemv_mfma(a, XV, WR, 18, ACC, True)
    d_off(a, 14, 512)
    a("s_lshl_b32 s62, s2, 10")
    a(f"s_add_u32 s62, s62, {WS_QP}")
    a(f"buffer_store_dwordx4 {v4(ACC)}, v14, {q(R_WS)}, s62 offen sc1")

def ffn_unit(a, cfg, lab):
    a("s_cmp_ge_u32 s2, 216")
    a(f"s_cbranch_scc1 {lab}_skip")
    a("s_mul_i32 s62, s2, 21846")
    a("s_lshr_b32 s62, s62, 16")
    a("s_mul_i32 s63, s62, 3")
    a("s_sub_u32 s63, s2, s63")
    a("s_cmp_ge_u32 s62, 36")
    a("s_cselect_b32 s64, 1, 0")
    a(f"s_cselect_b32 s{R_W}, s{P_WU}, s{P_WG}")
    a(f"s_cselect_b32 s{R_W+1}, s{P_WU+1}, s{P_WG+1}")
    a(f"s_mov_b32 s{R_W+2}, 5308416"); a(f"s_mov_b32 s{R_W+3}, 0x20000")
    a("s_mul_i32 s65, s64, 36")
    a("s_sub_u32 s62, s62, s65")
    w_voff(a, 14, 48, 9216)
    a(f"s_mul_i32 s66, s63, {192*9216}")
    a("s_lshl_b32 s65, s62, 8")
    a("s_add_u32 s66, s66, s65")
    w_loads(a, cfg, 14, "s66", 9216, 0, 44, WR)
    a_addr(a, 15, 576, 48)
    a(f"s_mul_i32 s65, s63, {192*4}")
    a("v_add_u32 v15, s65, v15")
    for k in range(12):
        a(f"ds_read_b128 {v4(XV+4*k)}, v15 offset:{L_XD + 16*k}")
    a("s_waitcnt vmcnt(40) lgkmcnt(0)")
    gemv_mfma(a, XV, WR, 4, ACC, True)
    w_loads(a, cfg, 14, "s66", 9216, 44, 4, WR)
    a("s_waitcnt vmcnt(4)")
    gemv_mfma(a, XV + 4, WR + 16, 40, ACC, False)
    a("s_waitcnt vmcnt(0)")
    gemv_mfma(a, XV + 44, WR, 4, ACC, False)
    d_off(a, 14, 4608 * 4)
    a("s_mul_i32 s64, s64, 3"); a("s_add_u32 s64, s64, s63"); a(f"s_mul_i32 s64, s64, {2*18432}")
    a("s_lshl_b32 s62, s62, 9"); a("s_add_u32 s64, s64, s62"); a(f"s_add_u32 s64, s64, {WS_GP}")
    a(f"buffer_store_dwordx4 {v4(ACC)}, v14, {q(R_WS)}, s64 offen sc1")
    a.fence()
    a.label(f"{lab}_skip")

def q_gather(a, cfg):
    a("v_lshrrev_b32 v14, 5, v1"); a("v_lshlrev_b32 v14, 13, v14")
    a("v_and_b32 v7, 31, v1"); a("v_lshl_add_u32 v14, v7, 4, v14")
    a(f"s_lshl_b32 s62, {S_C}, 14"); a(f"s_lshl_b32 s63, {S_B}, 9"); a("s_add_u32 s62, s62, s63")
    a(f"s_add_u32 s62, s62, {WS_QP}"); a("s_add_u32 s63, s62, 4096")
    for ks in range(8):
        a(f"buffer_load_dwordx4 {v4(XV+4*ks)}, v14, {q(R_WS)}, {'s62' if ks < 4 else 's63'} offen offset:{(ks%4)*1024} sc1")
    a("s_waitcnt vmcnt(0)")
    for ks in range(1, 8):
        for i in range(4):
            a(f"v_add_f32 v{XV+i}, v{XV+i}, v{XV+4*ks+i}")
    a(f"v_cvt_pk_bf16_f32 v8, v{XV}, v{XV+1}")
    a(f"v_cvt_pk_bf16_f32 v9, v{XV+2}, v{XV+3}")
    a("v_lshlrev_b32 v14, 3, v1")
    a(f"ds_write_b64 v14, v[8:9] offset:{L_QL}")
    a("s_waitcnt lgkmcnt(0)")

def out_w_issue(a, cfg, ptr, nbytes, rows, wr):
    rpk = rows // 4
    srd(a, R_W, ptr, nbytes)
    w_voff(a, 13, rpk, 1152)
    a(f"s_mul_i32 s62, {S_R}, {rows*1152}")
    a(f"s_mul_i32 s63, {S_S}, 144")
    a("s_add_u32 s62, s62, s63")
    exec9(a)
    w_loads(a, cfg, 13, "s62", 1152, 0, rpk, wr)
    execall(a)

def out_store(a, base):
    d_off(a, 14, 32 * 288)
    a(f"s_mul_i32 s62, {S_S}, {2*32*288}"); a(f"s_mul_i32 s63, {S_R}, 288"); a("s_add_u32 s62, s62, s63")
    a(f"s_add_u32 s62, s62, {base}")
    exec9(a)
    a(f"buffer_store_dwordx4 {v4(ACC)}, v14, {q(R_WS)}, s62 offen sc1")
    execall(a)

def ffn_consume(a, cfg):
    WD = 112
    out_w_issue(a, cfg, P_WD, 5308416, 144, WD)
    a("v_lshrrev_b32 v14, 5, v1"); a("s_mov_b32 s60, 18432"); a("v_mul_lo_u32 v14, v14, s60")
    a("v_and_b32 v7, 31, v1"); a("v_lshl_add_u32 v14, v7, 4, v14")
    a(f"s_mul_i32 s62, {S_R}, 576"); a(f"s_add_u32 s62, s62, {WS_GP}")
    G = 28
    for m in range(6):
        a(f"s_add_u32 s63, s62, {m*2*18432}")
        for rd in range(2):
            a(f"buffer_load_dwordx4 {v4(G+8*m+4*rd)}, v14, {q(R_WS)}, s63 offen offset:{rd*512} sc1")
    a("s_waitcnt vmcnt(0)")
    for i in range(8):
        a(f"v_add_f32 v{G+i}, v{G+i}, v{G+8+i}"); a(f"v_add_f32 v{G+i}, v{G+i}, v{G+16+i}")
        a(f"v_add_f32 v{G+24+i}, v{G+24+i}, v{G+32+i}"); a(f"v_add_f32 v{G+24+i}, v{G+24+i}, v{G+40+i}")
    for i in range(8):
        rne(a, G + i); rne(a, G + 24 + i)
    T = G + 8
    for i in range(8):
        a(f"v_mul_f32 v{T+i}, {S_LOG2E}, v{G+i}")
    for i in range(8):
        a(f"v_exp_f32 v{T+i}, -v{T+i}")
    for i in range(8):
        a(f"v_add_f32 v{T+i}, 1.0, v{T+i}")
    for i in range(8):
        a(f"v_rcp_f32 v{T+i}, v{T+i}")
    for i in range(8):
        a(f"v_mul_f32 v{G+i}, v{G+i}, v{T+i}")
    for i in range(8):
        rne(a, G + i)
    for i in range(8):
        a(f"v_mul_f32 v{G+i}, v{G+i}, v{G+24+i}")
    for i in range(8):
        a(f"v_cvt_pk_bf16_f32 v{G+i}, v{G+i}, v{G+i}")
    a("v_lshrrev_b32 v14, 5, v1"); a("v_lshlrev_b32 v14, 10, v14")
    a("v_and_b32 v7, 31, v1"); a("v_lshl_add_u32 v14, v7, 4, v14")
    a(f"ds_write_b128 v14, {v4(G)} offset:{L_HD}")
    a(f"ds_write_b128 v14, {v4(G+4)} offset:{L_HD+512}")
    a_addr(a, 15, 256, 36)
    a("s_waitcnt lgkmcnt(0)")
    for k in range(9):
        a(f"ds_read_b128 {v4(XV+4*k)}, v15 offset:{L_HD + 16*k}")
    a("s_waitcnt lgkmcnt(0)")
    gemv_mfma(a, XV, WD, 36, ACC, True)
    out_store(a, WS_S3)

WO = 128
def hop1_consume(a, cfg):
    a("v_lshrrev_b32 v14, 5, v1"); a("v_lshlrev_b32 v15, 6, v14"); a("v_lshlrev_b32 v14, 12, v14")
    a("v_and_b32 v7, 31, v1"); a("v_lshl_add_u32 v14, v7, 4, v14")
    a(f"s_lshl_b32 s62, {S_R}, 14"); a(f"s_add_u32 s62, s62, {WS_S1}"); a("s_add_u32 s63, s62, 8192")
    O = 28; ML = 60
    for j in range(8):
        a(f"buffer_load_dwordx4 {v4(O+4*j)}, v14, {q(R_WS)}, s62 offen offset:{j*512} sc1")
    for k in range(4):
        a(f"buffer_load_dwordx4 {v4(ML+4*k)}, v15, {q(R_WS)}, s63 offen offset:{k*16} sc1")
    a("s_waitcnt vmcnt(0)")
    a(f"v_max3_f32 v8, v{ML}, v{ML+2}, v{ML+4}")
    a(f"v_max3_f32 v9, v{ML+6}, v{ML+8}, v{ML+10}")
    a(f"v_max3_f32 v8, v8, v{ML+12}, v{ML+14}")
    a("v_max_f32 v8, v8, v9")
    for j in range(8): a(f"v_sub_f32 v{ML+2*j}, v{ML+2*j}, v8")
    for j in range(8): a(f"v_exp_f32 v{ML+2*j}, v{ML+2*j}")
    a(f"v_mul_f32 v9, v{ML}, v{ML+1}")
    for j in range(1, 8): a(f"v_fmac_f32 v9, v{ML+2*j}, v{ML+2*j+1}")
    a("v_rcp_f32 v9, v9")
    for i in range(4): a(f"v_mul_f32 v{O+i}, v{O+i}, v{ML}")
    for j in range(1, 8):
        for i in range(4): a(f"v_fmac_f32 v{O+i}, v{O+4*j+i}, v{ML+2*j}")
    for i in range(4): a(f"v_mul_f32 v{O+i}, v{O+i}, v9")
    for i in range(4): a(f"v_cvt_pk_bf16_f32 v{O+i}, v{O+i}, v{O+i}")
    a("v_lshlrev_b32 v14, 4, v1")
    a(f"ds_write_b128 v14, {v4(O)} offset:{L_OD}")
    a_addr(a, 15, 128, 32)
    a("s_waitcnt lgkmcnt(0)")
    for k in range(8):
        a(f"ds_read_b128 {v4(XV+4*k)}, v15 offset:{L_OD + 16*k}")
    a("s_waitcnt lgkmcnt(0)")
    gemv_mfma(a, XV, WO, 32, ACC, True)
    out_store(a, WS_S2)

def sum_slots(a, base, T, res):
    a("v_lshrrev_b32 v14, 5, v1"); a("v_mul_u32_u24 v14, 288, v14")
    a("v_and_b32 v7, 31, v1"); a("v_lshl_add_u32 v14, v7, 4, v14")
    a(f"s_lshl_b32 s62, {S_S}, 1"); a(f"s_add_u32 s62, s62, {S_R}"); a(f"s_mul_i32 s62, s62, {32*288}")
    a(f"s_add_u32 s62, s62, {base}")
    a("s_mov_b32 exec_lo, 0x3ffff"); a("s_mov_b32 exec_hi, 0x3ffff")
    for k in range(16):
        if k % 7 == 0: a(f"s_add_u32 s63, s62, {k*576}")
        a(f"buffer_load_dwordx4 {v4(T+4*k)}, v14, {q(R_WS)}, s63 offen offset:{(k%7)*576} sc1")
    execall(a)
    a("s_waitcnt vmcnt(0)")
    for step in (8, 4, 2, 1):
        for k in range(step):
            for i in range(4):
                a(f"v_add_f32 v{T+4*k+i}, v{T+4*k+i}, v{T+4*(k+step)+i}")
    for i in range(4): a(f"v_mov_b32 v{res+i}, v{T+i}")
    for i in range(4): a(f"v_permlane32_swap_b32 v{res+i}, v{T+i}")
    for i in range(4): a(f"v_add_f32 v{res+i}, v{res+i}, v{T+i}")
    for i in range(4): rne(a, res + i)

def final_out(a, FF, AT):
    srd(a, R_X, P_X, 2304)
    a(f"s_mul_i32 s62, {S_R}, 1152"); a(f"s_mul_i32 s63, {S_S}, 144"); a("s_add_u32 s62, s62, s63")
    a("v_lshlrev_b32 v14, 3, v1")
    a("s_mov_b64 exec, 0x3ffff")
    a(f"buffer_load_dwordx2 v[8:9], v14, {q(R_X)}, s62 offen")
    a("s_waitcnt vmcnt(0)")
    a("v_lshlrev_b32 v10, 16, v8"); a("v_and_b32 v11, 0xffff0000, v8")
    a("v_lshlrev_b32 v12, 16, v9"); a("v_and_b32 v13, 0xffff0000, v9")
    for i in range(4): a(f"v_add_f32 v{10+i}, v{10+i}, v{AT+i}")
    for i in range(4): rne(a, 10 + i)
    for i in range(4): a(f"v_add_f32 v{10+i}, v{10+i}, v{FF+i}")
    a("v_cvt_pk_bf16_f32 v8, v10, v11"); a("v_cvt_pk_bf16_f32 v9, v12, v13")
    srd(a, R_X, P_OUT, 2304)
    a(f"buffer_store_dwordx2 v[8:9], v14, {q(R_X)}, s62 offen")
    execall(a)

BUF = 64
def stream_loads(a, cfg, s):
    r = BUF + 32 * s
    for i in range(4):
        a(f"buffer_load_dwordx4 {v4(r+4*i)}, v6, {q(R_K)}, s70 offen offset:{i*1024} {cfg.POL}")
    for i in range(4):
        a(f"buffer_load_dwordx4 {v4(r+16+4*i)}, v7, {q(R_V)}, s70 offen offset:{i*1024} {cfg.POL}")

def stream_setup(a, cfg):
    srd(a, R_K, P_K, 0x10000000); srd(a, R_V, P_V, 0x10000000)
    a("v_lshlrev_b32 v7, 4, v1")
    a("v_and_b32 v6, 3, v1"); a("v_lshlrev_b32 v6, 4, v6")
    a("v_bfe_u32 v25, v1, 2, 2"); a("v_lshl_add_u32 v6, v25, 8, v6")
    a("v_lshrrev_b32 v25, 4, v1"); a("v_lshl_add_u32 v6, v25, 6, v6")
    a(f"s_lshl_b32 s71, {S_B}, 4"); a(f"s_add_u32 s71, s71, {S_C}"); a("s_lshl_b32 s71, s71, 23")
    a(f"s_mul_i32 s72, {S_J}, {cfg.NSTAT*32768}"); a("s_add_u32 s72, s72, s71")
    a(f"s_sub_u32 s73, {S_WAVE}, 2"); a("s_lshl_b32 s74, s73, 12"); a("s_add_u32 s70, s72, s74")

def stream_compute(a, cfg, s, mid1=None, mid2=None):
    r = BUF + 32 * s
    K = [r + 4 * i for i in range(4)]; V = [r + 16 + 4 * i for i in range(4)]
    D0, D1 = 28, 32
    a(f"v_mfma_f32_16x16x32_bf16 {v4(D0)}, {v4(K[0])}, v[8:11], 0")
    a(f"v_mfma_f32_16x16x32_bf16 {v4(D1)}, {v4(K[2])}, v[8:11], 0")
    a(f"v_mfma_f32_16x16x32_bf16 {v4(D0)}, {v4(K[1])}, v[12:15], {v4(D0)}")
    a(f"v_mfma_f32_16x16x32_bf16 {v4(D1)}, {v4(K[3])}, v[12:15], {v4(D1)}")
    dp = "row_mask:0xf bank_mask:0xf"
    for (d, sreg) in ((D0, 36), (D1, 37)):
        a(f"v_mov_b32_dpp v{sreg}, v{d} quad_perm:[0,0,0,0] {dp}")
    for i in range(1, 4):
        for (d, sreg) in ((D0, 36), (D1, 37)):
            a(f"v_add_f32_dpp v{sreg}, v{d+i}, v{sreg} quad_perm:[{i},{i},{i},{i}] {dp}")
    if mid1: mid1()
    a("v_cvt_pk_bf16_f32 v38, v36, v37")
    a("v_lshlrev_b32 v36, 16, v38"); a("v_and_b32 v37, 0xffff0000, v38")
    a(f"v_mul_f32 v36, {S_SCALE}, v36"); a(f"v_mul_f32 v37, {S_SCALE}, v37")
    a("v_cvt_pk_bf16_f32 v38, v36, v37")
    a("v_lshlrev_b32 v36, 16, v38"); a("v_and_b32 v37, 0xffff0000, v38")
    a("v_max_f32 v39, v36, v37")
    a("v_cmp_gt_f32 vcc, v39, v20")
    a(f"s_cbranch_vccnz L_slow{s}")
    a.label(f"L_back{s}")
    a(f"v_fma_f32 v36, v36, {S_LOG2E}, v26"); a(f"v_fma_f32 v37, v37, {S_LOG2E}, v26")
    a("v_exp_f32 v36, v36"); a("v_exp_f32 v37, v37")
    a("v_cvt_pk_bf16_f32 v40, v36, v36"); a("v_cvt_pk_bf16_f32 v41, v37, v37")
    a("v_add_f32 v21, v21, v36"); a("v_add_f32 v21, v21, v37")
    hm = f"row_half_mirror {dp}"
    for u, pp in ((0, 40), (1, 41)):
        A0 = 44 + 8 * u; A1 = A0 + 4
        a(f"v_and_b32 v{A0}, v{pp}, v2"); a(f"v_and_b32 v{A0+1}, v{pp}, v3")
        a(f"v_and_b32 v{A1+2}, v{pp}, v4"); a(f"v_and_b32 v{A1+3}, v{pp}, v5")
        a(f"v_and_b32_dpp v{A0+2}, v{pp}, v4 {hm}"); a(f"v_and_b32_dpp v{A0+3}, v{pp}, v5 {hm}")
        a(f"v_and_b32_dpp v{A1}, v{pp}, v2 {hm}"); a(f"v_and_b32_dpp v{A1+1}, v{pp}, v3 {hm}")
    if mid2: mid2()
    for i in range(4):
        a(f"v_mfma_f32_16x16x32_bf16 v[16:19], {v4(44+4*i)}, {v4(V[i])}, v[16:19]")

def stream_slow(a, s):
    dp = "row_mask:0xf bank_mask:0xf"
    a.label(f"L_slow{s}")
    a("s_nop 7")
    a("v_max_f32 v39, v39, v20")
    a(f"v_max_f32_dpp v39, v39, v39 row_half_mirror {dp}")
    a("v_mov_b32 v42, v39"); a("v_permlane16_swap_b32 v42, v39"); a("v_max_f32 v39, v39, v42")
    a("v_mov_b32 v42, v39"); a("v_permlane32_swap_b32 v42, v39"); a("v_max_f32 v20, v39, v42")
    a(f"v_mul_f32 v42, {S_LOG2E}, v20")
    a("v_add_f32 v43, v42, v26")
    a("v_exp_f32 v43, -v43")
    a("v_sub_f32 v26, 0, v42")
    a("v_mul_f32 v21, v21, v43")
    a("v_readlane_b32 s76, v43, 0"); a("v_readlane_b32 s77, v43, 8")
    a("v_mov_b32 v42, s76")
    a("s_mov_b32 exec_lo, 0")
    a("v_mov_b32 v42, s77")
    execall(a)
    for i in range(4): a(f"v_mul_f32 v{16+i}, v{16+i}, v42")
    a.fence()
    a(f"s_branch L_back{s}")

def stream_main(a, cfg, fused):
    NS = cfg.NS
    stream_setup(a, cfg)
    stream_loads(a, cfg, 0)
    a("s_barrier")
    for s in range(1, NS):
        a(f"s_add_u32 s70, s70, {cfg.NSW*4096}")
        stream_loads(a, cfg, s)
    for i in range(4): a(f"v_mov_b32 v{16+i}, 0")
    a(f"v_mov_b32 v20, {f2u(-1e30):#x}"); a(f"v_mov_b32 v26, {f2u(1.4426950408889634e30):#x}")
    a("v_mov_b32 v21, 0")
    a(f"v_mov_b32 v22, {L_CNT}"); a("v_mov_b32 v23, 1")
    a("s_mov_b32 s78, 0")
    a.label("L_qw")
    a(f"ds_read_b32 v24, v22 offset:4")
    a("s_waitcnt lgkmcnt(0)")
    a("v_readfirstlane_b32 s75, v24")
    a("s_cmp_lg_u32 s75, 0"); a("s_cbranch_scc1 L_qok")
    a("s_sleep 2")
    a("s_add_u32 s78, s78, 1"); a("s_cmp_lt_u32 s78, 0x200000"); a("s_cbranch_scc1 L_qw")
    a.label("L_qok")
    a("v_bfe_u32 v25, v1, 3, 1"); a("v_lshlrev_b32 v25, 8, v25")
    a("v_lshrrev_b32 v27, 4, v1"); a("v_lshl_add_u32 v25, v27, 6, v25")
    a("v_and_b32 v27, 3, v1"); a("v_lshl_add_u32 v25, v27, 4, v25")
    a(f"ds_read_b128 v[28:31], v25 offset:{L_QL}")
    a("v_and_b32 v27, 4, v1"); a("v_cmp_eq_u32 vcc, 0, v27")
    a("s_waitcnt lgkmcnt(0)")
    for i in range(4):
        a(f"v_cndmask_b32 v{8+i}, 0, v{28+i}, vcc")
        a(f"v_cndmask_b32 v{12+i}, v{28+i}, 0, vcc")
    a("s_mov_b32 s79, 0")
    a.fence()
    a.label("L_loop")
    for s in range(NS):
        a(f"s_waitcnt vmcnt({8*(NS-1)})")
        a("s_mov_b64 exec, 1")
        a("ds_add_rtn_u32 v24, v22, v23")
        execall(a)
        def mid1():
            a("s_waitcnt lgkmcnt(0)")
            a("v_readfirstlane_b32 s75, v24")
            a("s_lshr_b32 s74, s75, 3"); a("s_min_u32 s74, s74, 255"); a("s_lshl_b32 s74, s74, 2")
            a("v_mov_b32 v25, s74")
            a(f"ds_read_b32 v27, v25 offset:{L_TAB}")
        stream_compute(a, cfg, s, mid1)
        a("s_cmp_lg_u32 s79, 0"); a(f"s_cbranch_scc1 L_dr{s}")
        a("s_mov_b32 s78, 0")
        a.label(f"L_poll{s}")
        a("s_waitcnt lgkmcnt(0)")
        a("v_readfirstlane_b32 s74, v27")
        a("s_cmp_lg_u32 s74, -1"); a(f"s_cbranch_scc1 L_got{s}")
        a("s_sleep 1")
        a(f"ds_read_b32 v27, v25 offset:{L_TAB}")
        a("s_add_u32 s78, s78, 1"); a("s_cmp_lt_u32 s78, 0x200000"); a(f"s_cbranch_scc1 L_poll{s}")
        a.label(f"L_got{s}")
        a("s_cmp_ge_u32 s74, 256"); a(f"s_cbranch_scc1 L_st{s}")
        a("s_lshl_b32 s70, s74, 15"); a("s_and_b32 s75, s75, 7"); a("s_lshl_b32 s75, s75, 12")
        a("s_add_u32 s70, s70, s75"); a("s_add_u32 s70, s70, s71")
        stream_loads(a, cfg, s)
        a(f"s_branch L_nx{s}")
        a.label(f"L_st{s}")
        a(f"s_mov_b32 s79, {NS}"); a("s_waitcnt vmcnt(0)")
        a.label(f"L_dr{s}")
        a("s_sub_u32 s79, s79, 1"); a("s_cmp_eq_u32 s79, 0"); a("s_cbranch_scc1 L_sdone")
        a.label(f"L_nx{s}")
    a("s_branch L_loop")
    for s in range(NS): stream_slow(a, s)
    a.label("L_sdone")
    a("s_nop 7")
    dp = "row_mask:0xf bank_mask:0xf"
    a(f"v_add_f32_dpp v21, v21, v21 row_half_mirror {dp}")
    a("v_mov_b32 v42, v21"); a("v_permlane16_swap_b32 v42, v21"); a("v_add_f32 v21, v21, v42")
    a("v_mov_b32 v42, v21"); a("v_permlane32_swap_b32 v42, v21"); a("v_add_f32 v43, v21, v42")
    a("v_sub_f32 v42, 0, v26")
    a("s_lshl_b32 s74, s73, 10")
    a("v_add_u32 v25, s74, v7")
    a(f"ds_write_b128 v25, v[16:19] offset:{L_PART}")
    a("s_lshl_b32 s74, s73, 4")
    a("v_add_u32 v25, s74, v1")
    a("s_mov_b64 exec, 0x101")
    a(f"ds_write_b64 v25, v[42:43] offset:{L_PML}")
    execall(a)
    a("s_waitcnt lgkmcnt(0)")
    a("s_barrier")

def lds_init(a, cfg):
    a("v_mov_b32 v8, -1"); a("v_mov_b32 v9, -1"); a("v_mov_b32 v10, -1"); a("v_mov_b32 v11, -1")
    a("v_lshlrev_b32 v12, 4, v1")
    a(f"ds_write_b128 v12, v[8:11] offset:{L_TAB}")
    a(f"s_mul_i32 s60, {S_J}, {cfg.NSTAT}")
    a("v_add_u32 v13, s60, v1")
    a("v_lshlrev_b32 v12, 2, v1")
    a(f"s_mov_b64 exec, {(1 << cfg.NSTAT) - 1:#x}")
    a(f"ds_write_b32 v12, v13 offset:{L_TAB}")
    execall(a)
    a(f"v_mov_b32 v8, {cfg.NS*cfg.NSW}"); a("v_mov_b32 v9, 0"); a(f"v_mov_b32 v12, {L_CNT}")
    a("ds_write_b64 v12, v[8:9]")
    a("s_waitcnt lgkmcnt(0)")

def set_qflag(a):
    a(f"v_mov_b32 v12, {L_FLAG}"); a("v_mov_b32 v8, 1")
    a("ds_write_b32 v12, v8")

def scheduler(a, cfg):
    a(f"v_mov_b32 v12, {L_CNT}")
    a(f"s_lshl_b32 s62, {S_G}, 12"); a(f"s_add_u32 s62, s62, {WS_TICK}")
    a("v_mov_b32 v13, 0")
    a(f"s_mov_b32 s64, {cfg.NSTAT}")
    a("s_mov_b32 s78, 0")
    a.label("L_sl")
    a("ds_read_b32 v8, v12")
    a("s_waitcnt lgkmcnt(0)")
    a("v_readfirstlane_b32 s63, v8")
    a(f"s_add_u32 s63, s63, {cfg.LOOK}")
    a("s_lshl_b32 s65, s64, 3")
    a("s_cmp_ge_u32 s63, s65"); a("s_cbranch_scc1 L_fetch")
    a("s_sleep 4")
    a("s_add_u32 s78, s78, 1"); a("s_cmp_lt_u32 s78, 0x200000"); a("s_cbranch_scc1 L_sl")
    a.label("L_fetch")
    a("v_mov_b32 v9, 1")
    a("s_mov_b64 exec, 1")
    a(f"buffer_atomic_add v9, v13, {q(R_WS)}, s62 offen sc0")
    execall(a)
    a("s_waitcnt vmcnt(0)")
    a("v_readfirstlane_b32 s63, v9")
    a(f"s_add_u32 s63, s63, {8*cfg.NSTAT}")
    a("s_cmp_ge_u32 s63, 256"); a("s_cbranch_scc1 L_fin")
    a("v_mov_b32 v10, s63")
    a("s_lshl_b32 s65, s64, 2"); a("v_mov_b32 v11, s65")
    a(f"ds_write_b32 v11, v10 offset:{L_TAB}")
    a("s_add_u32 s64, s64, 1")
    a("s_cmp_lt_u32 s64, 160"); a("s_cbranch_scc1 L_sl")
    a.label("L_fin")
    a("v_mov_b32 v10, 0x1000")
    a("s_lshl_b32 s65, s64, 2")
    a("v_lshl_add_u32 v11, v1, 2, s65")
    a(f"ds_write_b32 v11, v10 offset:{L_TAB}")
    a(f"v_mov_b32 v11, {255*4}")
    a(f"ds_write_b32 v11, v10 offset:{L_TAB}")
    a("s_waitcnt lgkmcnt(0)")

def wg_merge(a, cfg):
    N = cfg.NSW
    O = 28; ML = 28 + 4 * N
    a("v_lshlrev_b32 v14, 4, v1")
    a("v_lshrrev_b32 v15, 5, v1"); a("v_lshlrev_b32 v15, 3, v15")
    for w in range(N): a(f"ds_read_b64 {v2(ML+2*w)}, v15 offset:{L_PML+16*w}")
    for w in range(N): a(f"ds_read_b128 {v4(O+4*w)}, v14 offset:{L_PART+1024*w}")
    a(f"s_waitcnt lgkmcnt({N})")
    a(f"v_max_f32 v8, v{ML}, v{ML+2}")
    for w in range(2, N): a(f"v_max_f32 v8, v8, v{ML+2*w}")
    for w in range(N): a(f"v_sub_f32 v{ML+2*w}, v{ML+2*w}, v8")
    for w in range(N): a(f"v_exp_f32 v{ML+2*w}, v{ML+2*w}")
    a(f"v_mul_f32 v9, v{ML}, v{ML+1}")
    for w in range(1, N): a(f"v_fmac_f32 v9, v{ML+2*w}, v{ML+2*w+1}")
    a("s_waitcnt lgkmcnt(0)")
    for i in range(4): a(f"v_mul_f32 v{O+i}, v{O+i}, v{ML}")
    for w in range(1, N):
        for i in range(4): a(f"v_fmac_f32 v{O+i}, v{O+4*w+i}, v{ML+2*w}")
    d_off(a, 14, 16384)
    a(f"s_lshl_b32 s62, {S_C}, 15"); a(f"s_add_u32 s62, s62, {WS_S1}")
    a(f"s_lshl_b32 s63, {S_B}, 12"); a(f"s_lshl_b32 s64, {S_J}, 9"); a("s_add_u32 s63, s63, s64"); a("s_add_u32 s63, s63, s62")
    a(f"buffer_store_dwordx4 {v4(O)}, v14, {q(R_WS)}, s63 offen sc1")
    a(f"s_lshl_b32 s63, {S_B}, 6"); a(f"s_lshl_b32 s64, {S_J}, 3"); a("s_add_u32 s63, s63, s64"); a("s_add_u32 s63, s63, s62")
    a("s_add_u32 s63, s63, 8192")
    a("s_mov_b32 exec_lo, 1"); a("s_mov_b32 exec_hi, 1")
    a(f"buffer_store_dwordx2 v[8:9], v14, {q(R_WS)}, s63 offen sc1")
    execall(a)

def zero_ticket(a, lab):
    a(f"s_cmp_lg_u32 {S_J}, 0"); a(f"s_cbranch_scc1 {lab}")
    a(f"s_lshl_b32 s62, {S_G}, 12"); a(f"s_add_u32 s62, s62, {WS_TICK}")
    a("v_mov_b32 v13, 0")
    a("s_mov_b64 exec, 1")
    a(f"buffer_store_dword v13, v13, {q(R_WS)}, s62 offen sc1")
    execall(a)
    a.label(lab)

def kd(name, nv=256, ns=96):
    return f""".section .rodata,"a"
.p2align 6
.amdhsa_kernel {name}
  .amdhsa_next_free_vgpr {nv}
  .amdhsa_next_free_sgpr {ns}
  .amdhsa_accum_offset {(nv+3)//4*4}
  .amdhsa_group_segment_fixed_size 0
  .amdhsa_kernarg_size 96
  .amdhsa_user_sgpr_count 2
  .amdhsa_user_sgpr_kernarg_segment_ptr 1
  .amdhsa_system_sgpr_workgroup_id_x 1
  .amdhsa_float_denorm_mode_32 3
.end_amdhsa_kernel
"""

def khead(a, name):
    a.raw(".text"); a.raw(f".globl {name}"); a.raw(".p2align 8"); a.raw(f".type {name},@function"); a.label(name)

def gen_multi(cfg):
    a = Asm()
    nthr = (cfg.NSW + 2) * 64
    a.raw(f"; @launch kernel=pre_kernel grid=(256,1,1) block=(128,1,1) lds={LDS_SIZE}")
    a.raw(f"; @launch kernel=main_kernel grid=(256,1,1) block=({nthr},1,1) lds={LDS_SIZE}")
    a.raw(f"; @launch kernel=hop_kernel grid=(256,1,1) block=(64,1,1) lds={LDS_SIZE}")
    a.raw(f"; @launch kernel=fin_kernel grid=(256,1,1) block=(64,1,1) lds={LDS_SIZE}")
    a.raw('.amdgcn_target "amdgcn-amd-amdhsa--gfx950"')
    khead(a, "pre_kernel")
    prologue(a, "P_end")
    ln_load(a, 240)
    a(f"s_cmp_lg_u32 {S_WAVE}, 0"); a("s_cbranch_scc1 P_w1")
    qproj_issue(a, cfg)
    a("s_waitcnt vmcnt(18)")
    ln_compute(a, 240, XV)
    qproj_compute(a, cfg)
    zero_ticket(a, "P_zt")
    a("s_endpgm")
    a.label("P_w1")
    a("s_waitcnt vmcnt(0)")
    ln_compute(a, 240, XV)
    ffn_unit(a, cfg, "P_ffn")
    a.label("P_end")
    a("s_endpgm")
    khead(a, "main_kernel")
    prologue(a, "M_end")
    a(f"s_cmp_ge_u32 {S_WAVE}, 2"); a("s_cbranch_scc1 M_stream")
    a("s_setprio 3")
    a(f"s_cmp_eq_u32 {S_WAVE}, 1"); a("s_cbranch_scc1 M_w1")
    lds_init(a, cfg)
    a("s_barrier")
    q_gather(a, cfg)
    set_qflag(a)
    scheduler(a, cfg)
    a("s_barrier")
    wg_merge(a, cfg)
    a("s_endpgm")
    a.label("M_w1")
    a("s_barrier")
    ffn_consume(a, cfg)
    a("s_endpgm")
    a.label("M_stream")
    stream_main(a, cfg, False)
    a.label("M_end")
    a("s_endpgm")
    khead(a, "hop_kernel")
    prologue(a, "H_end")
    out_w_issue(a, cfg, P_WO, 4718592, 128, WO)
    hop1_consume(a, cfg)
    a.label("H_end")
    a("s_endpgm")
    khead(a, "fin_kernel")
    prologue(a, "F_end")
    a(f"s_cmp_ge_u32 {S_R}, 2"); a("s_cbranch_scc1 F_end")
    sum_slots(a, WS_S3, 28, 100)
    sum_slots(a, WS_S2, 28, 104)
    final_out(a, 100, 104)
    a.label("F_end")
    a("s_endpgm")
    txt = a.text()
    for k in ("pre_kernel", "main_kernel", "hop_kernel", "fin_kernel"):
        txt += kd(k)
    return txt

if __name__ == "__main__":
    cfg = Cfg()
    out = sys.argv[1] if len(sys.argv) > 1 else f"cdna_kernels/{NAME}.s"
    hdr = open(f"cdna_kernels/{NAME}.s.ref").read().split("; Override launch")[0]
    open(out, "w").write(hdr + gen_multi(cfg))
    print("wrote", out)
```

```python
import struct, sys
from asmlib import Asm

NAME = "parallel_sum__gqa_block_cached__swiglu_ffn__decode"
def f2u(x): return struct.unpack("<I", struct.pack("<f", x))[0]
SCALE = f2u(128 ** -0.5)
LOG2E = f2u(1.4426950408889634)

WS_EPOCH = 0x040000
WS_CL   = 0x050000
WS_TICK = 0x080000
WS_QP   = 0x100000
WS_GP   = 0x200000
WS_S1   = 0x300000
WS_S2   = 0x400000
WS_S3   = 0x500000
WS_DIAG = 0x700000
WS_SIZE = 0x800000
L_TAB = 0x0000; L_CNT = 0x0800; L_FLAG = 0x0804; L_FLAG2 = 0x0808
L_XD = 0x0900; L_QL = 0x1B00; L_HD = 0x1D00; L_OD = 0x2500; L_PML = 0x2900; L_PART = 0x3000
LDS_SIZE = 0x5000

class Cfg:
    NSW = 6
    NS = 6
    NSS = 3
    NSTAT = 48
    LOOK = 8
    BIG = 2
    THR = 480
    POL = "nt"
    WPOL = "nt"
    DIAG = 0

S_WAVE, S_C, S_B, S_J, S_G = "s3", "s4", "s5", "s6", "s7"
S_R, S_S = "s8", "s9"
S_SCALE, S_LOG2E = "s10", "s11"
S_TA, S_TB = "s12", "s13"
P_X, P_K, P_V, P_WQ, P_WO, P_WG, P_WU, P_WD, P_OUT, P_DBG, P_WS = 16, 18, 20, 22, 24, 28, 30, 32, 34, 36, 38
R_W, R_WS, R_K, R_V, R_X = 40, 44, 48, 52, 56
SO = 68
SPIN = 0x40000
DP = "row_mask:0xf bank_mask:0xf"

def srd(a, r, p, nbytes):
    a(f"s_mov_b32 s{r}, s{p}"); a(f"s_mov_b32 s{r+1}, s{p+1}")
    a(f"s_mov_b32 s{r+2}, {nbytes:#x}"); a(f"s_mov_b32 s{r+3}, 0x20000")
def q(r): return f"s[{r}:{r+3}]"
def v4(r): return f"v[{r}:{r+3}]"
def v2(r): return f"v[{r}:{r+1}]"
def execall(a): a("s_mov_b64 exec, -1")
def exec9(a):
    a("s_mov_b32 exec_lo, 0x01ff01ff"); a("s_mov_b32 exec_hi, 0x01ff01ff")
_lab = [0]
def newlab(p):
    _lab[0] += 1
    return f"{p}_{_lab[0]}"

def stamp(a, cfg, idx):
    if not cfg.DIAG: return
    a("s_memrealtime s[84:85]")
    a("s_waitcnt lgkmcnt(0)")
    a(f"s_mov_b32 s{88 + idx % 8}, s84")
def stamp_init(a, cfg):
    if not cfg.DIAG: return
    for i in range(8): a(f"s_mov_b32 s{88+i}, 0")
def stamp_flush(a, cfg, half):
    if not cfg.DIAG: return
    a("s_lshl_b32 s86, s2, 6"); a(f"s_add_u32 s86, s86, {WS_DIAG + half*32}")
    for i in range(8): a(f"v_mov_b32 v{20+i}, s{88+i}")
    a("v_mov_b32 v11, 0")
    a("s_mov_b64 exec, 1")
    a(f"buffer_store_dwordx4 v[20:23], v11, {q(R_WS)}, s86 offen")
    a(f"buffer_store_dwordx4 v[24:27], v11, {q(R_WS)}, s86 offen offset:16")
    execall(a)

def masks(a):
    a("v_and_b32 v8, 1, v1")
    a("v_lshlrev_b32 v8, 4, v8")
    a("v_mov_b32 v9, 0xffff")
    a("v_lshlrev_b32 v8, v8, v9")
    a("v_bfe_u32 v9, v1, 1, 2")
    for j in range(4):
        a(f"v_cmp_eq_u32 vcc, {j}, v9")
        a(f"v_cndmask_b32 v{2+j}, 0, v8, vcc")

def prologue(a, endlabel):
    a("s_load_dwordx16 s[16:31], s[0:1], 0")
    a("s_load_dwordx8 s[32:39], s[0:1], 64")
    a("s_cmp_ge_u32 s2, 256")
    a(f"s_cbranch_scc1 {endlabel}")
    a("v_lshrrev_b32 v6, 6, v0")
    a("v_and_b32 v1, 63, v0")
    a(f"v_readfirstlane_b32 {S_WAVE}, v6")
    a(f"s_lshr_b32 {S_G}, s2, 3")
    a(f"s_lshr_b32 {S_C}, s2, 4")
    a(f"s_and_b32 {S_B}, {S_G}, 1")
    a(f"s_and_b32 {S_J}, s2, 7")
    a(f"s_mov_b32 {S_SCALE}, {SCALE:#x}")
    a(f"s_mov_b32 {S_LOG2E}, {LOG2E:#x}")

def rowsum32(a, x, t):
    a(f"v_add_f32_dpp v{x}, v{x}, v{x} quad_perm:[1,0,3,2] {DP}")
    a(f"v_add_f32_dpp v{x}, v{x}, v{x} quad_perm:[2,3,0,1] {DP}")
    a(f"v_add_f32_dpp v{x}, v{x}, v{x} row_half_mirror {DP}")
    a(f"v_add_f32_dpp v{x}, v{x}, v{x} row_mirror {DP}")
    a(f"v_mov_b32 v{t}, v{x}")
    a(f"v_permlane16_swap_b32 v{t}, v{x}")
    a(f"v_add_f32 v{x}, v{x}, v{t}")

def rne(a, x):
    a(f"v_cvt_pk_bf16_f32 v{x}, v{x}, v{x}")
    a(f"v_and_b32 v{x}, 0xffff0000, v{x}")
def rne2(a, x, y, t):
    a(f"v_cvt_pk_bf16_f32 v{t}, v{x}, v{y}")
    a(f"v_lshlrev_b32 v{x}, 16, v{t}")
    a(f"v_and_b32 v{y}, 0xffff0000, v{t}")

XR = 46
XV = 28
ACC = 16
def ln_addr(a):
    a("v_lshrrev_b32 v6, 5, v1")
    a("v_mul_u32_u24 v6, 1152, v6")
    a("v_and_b32 v7, 31, v1")
    a("v_lshl_add_u32 v6, v7, 2, v6")
def ln_load(a):
    for k in range(9):
        a(f"buffer_load_dword v{XR+k}, v6, {q(R_X)}, 0 offen offset:{128*k}")

def ln_compute(a):
    e = XV
    for k in range(9):
        a(f"v_lshlrev_b32 v{e+2*k}, 16, v{XR+k}")
        a(f"v_and_b32 v{e+2*k+1}, 0xffff0000, v{XR+k}")
    a(f"v_add_f32 v8, v{e}, v{e+1}")
    a(f"v_add_f32 v9, v{e+2}, v{e+3}")
    for k in range(4, 18, 2):
        a(f"v_add_f32 v8, v8, v{e+k}")
        a(f"v_add_f32 v9, v9, v{e+k+1}")
    a("v_add_f32 v8, v8, v9")
    rowsum32(a, 8, 9)
    a(f"v_mul_f32 v8, {f2u(1.0/576):#x}, v8")
    for k in range(0, 18, 2):
        a(f"v_sub_f32 v12, v{e+k}, v8")
        a(f"v_sub_f32 v13, v{e+k+1}, v8")
        if k == 0:
            a("v_mul_f32 v10, v12, v12"); a("v_mul_f32 v11, v13, v13")
        else:
            a("v_fmac_f32 v10, v12, v12"); a("v_fmac_f32 v11, v13, v13")
    a("v_add_f32 v10, v10, v11")
    rne(a, 8)
    rowsum32(a, 10, 9)
    a(f"v_mul_f32 v10, {f2u(1.0/576):#x}, v10")
    rne(a, 10)
    a(f"v_add_f32 v10, {f2u(1e-5):#x}, v10")
    rne(a, 10)
    a("v_sqrt_f32 v10, v10")
    for k in range(18):
        a(f"v_sub_f32 v{e+k}, v{e+k}, v8")
    rne(a, 10)
    a("v_rcp_f32 v10, v10")
    for k in range(0, 18, 2):
        rne2(a, e + k, e + k + 1, 12 + (k // 2) % 2)
    for k in range(18):
        a(f"v_mul_f32 v{e+k}, v{e+k}, v10")
    a("v_lshlrev_b32 v6, 1, v6")
    for k in range(9):
        a(f"v_cvt_pk_bf16_f32 v{e+2*k}, v{e+2*k}, v{e+2*k}")
        a(f"v_cvt_pk_bf16_f32 v{e+2*k+1}, v{e+2*k+1}, v{e+2*k+1}")
        a(f"ds_write_b64 v6, {v2(e+2*k)} offset:{L_XD + 256*k}")
    a("s_waitcnt lgkmcnt(0)")

def w_voff(a, vo, rpk, rs):
    a(f"v_lshrrev_b32 v{vo}, 4, v1")
    a(f"s_mov_b32 s60, {rpk*rs}")
    a(f"v_mul_lo_u32 v{vo}, v{vo}, s60")
    a("v_and_b32 v7, 15, v1")
    a(f"v_lshl_add_u32 v{vo}, v7, 4, v{vo}")

def w_burst(a, cfg, vo, nv, vtmp, sbase, ns, rs, wr, n):
    per = 4095 // rs + 1
    vs = [vo] + [vtmp + k for k in range(nv - 1)]
    for k in range(1, nv):
        a(f"v_add_u32 v{vs[k]}, {k*ns*per*rs:#x}, v{vo}")
    a(f"s_mov_b32 s{SO}, {sbase}")
    for k in range(1, ns):
        a(f"s_add_u32 s{SO+k}, {sbase}, {k*per*rs}")
    assert n <= nv * ns * per
    def issue():
        for i in range(n):
            iv, rem = divmod(i, ns * per)
            is_, ii = divmod(rem, per)
            a(f"buffer_load_dwordx4 {v4(wr+4*i)}, v{vs[iv]}, {q(R_W)}, s{SO+is_} offen offset:{ii*rs} {cfg.WPOL}")
    return issue

def a_addr(a, va, rowlen, rpk):
    a(f"v_bfe_u32 v{va}, v1, 3, 1")
    a(f"v_mul_u32_u24 v{va}, {rowlen*4}, v{va}")
    a("v_lshrrev_b32 v7, 4, v1")
    a(f"v_mul_u32_u24 v7, {rpk*4}, v7")
    a(f"v_add_u32 v{va}, v{va}, v7")

def gemv_mfma(a, xv, wr, n, acc, first, A0=20):
    def mk(k):
        q_ = A0 + 4 * (k & 1)
        for j in range(4):
            a(f"v_and_b32 v{q_+j}, v{xv+k}, v{2+j}")
    mk(0)
    for k in range(n):
        if k + 1 < n: mk(k + 1)
        c = "0" if (first and k == 0) else v4(acc)
        a(f"v_mfma_f32_16x16x32_bf16 {v4(acc)}, {v4(A0+4*(k&1))}, {v4(wr+4*k)}, {c}")

def d_off(a, vo, bstride, esz=4):
    sh = {4: 2, 8: 3}[esz]
    a(f"v_lshrrev_b32 v{vo}, 5, v1")
    a(f"v_mul_u32_u24 v{vo}, {bstride}, v{vo}")
    a("v_and_b32 v7, 15, v1")
    a(f"v_lshl_add_u32 v{vo}, v7, {sh+3}, v{vo}")
    a("v_bfe_u32 v7, v1, 4, 1")
    a(f"v_lshl_add_u32 v{vo}, v7, {sh+2}, v{vo}")

def canon(a, r, n):
    for i in range(n): a(f"v_min_u32 v{r+i}, -2, v{r+i}")

def tag_pack(a, d, g):
    for k in range(2):
        a(f"v_mov_b32 v{g+4*k}, v{d+2*k}")
        a(f"v_xor_b32 v{g+4*k+1}, {S_TA}, v{d+2*k+1}")
        a(f"v_mov_b32 v{g+4*k+2}, v{d+2*k+1}")
        a(f"v_xor_b32 v{g+4*k+3}, {S_TB}, v{d+2*k}")

def tag_check(a, gs):
    for n, g in enumerate(gs):
        a(f"v_bitop3_b32 v9, v{g+1}, v{g+2}, {S_TA} bitop3:0x96")
        a(f"v_bitop3_b32 v10, v{g+3}, v{g}, {S_TB} bitop3:0x96")
        if n == 0: a("v_or_b32 v8, v9, v10")
        else: a("v_or3_b32 v8, v8, v9, v10")

def sent_check(a, regs):
    regs = list(regs)
    a(f"v_max3_u32 v8, v{regs[0]}, v{regs[1]}, v{regs[2]}")
    a(f"v_max3_u32 v9, v{regs[3]}, v{regs[4]}, v{regs[5]}")
    rest = regs[6:]
    t = 8
    while rest:
        if len(rest) >= 2:
            a(f"v_max3_u32 v{t}, v{t}, v{rest[0]}, v{rest[1]}"); rest = rest[2:]
        else:
            a(f"v_max_u32 v{t}, v{t}, v{rest[0]}"); rest = rest[1:]
        t = 17 - t
    a("v_max_u32 v8, v8, v9")

def poll(a, issue, check, cmp_bad, mask=None, sleep=0):
    L = newlab("L_pl")
    a("s_mov_b32 s67, 0")
    a.fence()
    a.label(L)
    issue()
    a("s_waitcnt vmcnt(0)")
    check()
    if mask: mask()
    a(cmp_bad)
    if mask: execall(a)
    a(f"s_cbranch_vccz {L}_ok")
    if sleep: a(f"s_sleep {sleep}")
    a("s_add_u32 s67, s67, 1"); a(f"s_cmp_lt_u32 s67, {SPIN}"); a(f"s_cbranch_scc1 {L}")
    a.label(f"{L}_ok")
BAD_TAG = "v_cmp_ne_u32 vcc, 0, v8"
BAD_SENT = "v_cmp_eq_u32 vcc, -1, v8"

def lds_flag_wait(a, addr, sleep):
    L = newlab("L_fw")
    a(f"v_mov_b32 v9, {addr}")
    a("s_mov_b32 s67, 0")
    a.label(L)
    a("ds_read_b32 v8, v9")
    a("s_waitcnt lgkmcnt(0)")
    a("v_readfirstlane_b32 s60, v8")
    a("s_cmp_lg_u32 s60, 0"); a(f"s_cbranch_scc1 {L}_ok")
    a(f"s_sleep {sleep}")
    a("s_add_u32 s67, s67, 1"); a(f"s_cmp_lt_u32 s67, {SPIN*8}"); a(f"s_cbranch_scc1 {L}")
    a.label(f"{L}_ok")
def lds_flag_set(a, addr):
    a(f"v_mov_b32 v9, {addr}"); a("v_mov_b32 v8, 1")
    a("ds_write_b32 v9, v8")

WR = 64

def qproj_issue(a, cfg):
    srd(a, R_W, P_WQ, 4718592)
    w_voff(a, 14, 18, 8192)
    a(f"s_mul_i32 s62, {S_J}, {72*8192}")
    a(f"s_lshl_b32 s63, {S_G}, 8")
    a("s_add_u32 s62, s62, s63")
    return w_burst(a, cfg, 14, 2, 15, "s62", 9, 8192, WR, 18)

def qproj_compute(a, cfg):
    a_addr(a, 15, 576, 18)
    a(f"s_mul_i32 s62, {S_J}, {72*4}")
    a("v_add_u32 v15, s62, v15")
    for k in range(9):
        a(f"ds_read_b64 {v2(XV+2*k)}, v15 offset:{L_XD + 8*k}")
    d_off(a, 14, 1024, 8)
    a("s_lshl_b32 s62, s2, 11")
    a(f"s_add_u32 s62, s62, {WS_QP}")
    a("s_waitcnt vmcnt(0) lgkmcnt(0)")
    gemv_mfma(a, XV, WR, 18, ACC, True)
    tag_pack(a, ACC, 20)
    a(f"buffer_store_dwordx4 v[20:23], v14, {q(R_WS)}, s62 offen sc1")
    a(f"buffer_store_dwordx4 v[24:27], v14, {q(R_WS)}, s62 offen offset:16 sc1")

def q_gather(a, cfg):
    a("v_lshrrev_b32 v14, 5, v1"); a("v_lshlrev_b32 v14, 14, v14")
    a("v_and_b32 v7, 31, v1"); a("v_lshl_add_u32 v14, v7, 5, v14")
    a(f"s_lshl_b32 s62, {S_C}, 15"); a(f"s_lshl_b32 s63, {S_B}, 10"); a("s_add_u32 s62, s62, s63")
    for k in range(4): a(f"s_add_u32 s{SO+k}, s62, {WS_QP + k*4096}")
    G = WR
    def issue():
        for ks in range(8):
            for h in range(2):
                a(f"buffer_load_dwordx4 {v4(G+8*ks+4*h)}, v14, {q(R_WS)}, s{SO+ks//2} offen offset:{(ks%2)*2048+h*16} sc1")
    poll(a, issue, lambda: tag_check(a, [G + 4 * k for k in range(16)]), BAD_TAG)
    for ks in range(1, 8):
        for i in range(0, 8, 2):
            a(f"v_add_f32 v{G+i}, v{G+i}, v{G+8*ks+i}")
    a(f"v_cvt_pk_bf16_f32 v8, v{G}, v{G+2}")
    a(f"v_cvt_pk_bf16_f32 v9, v{G+4}, v{G+6}")
    a("v_lshlrev_b32 v14, 3, v1")
    a(f"ds_write_b64 v14, v[8:9] offset:{L_QL}")
    a("s_waitcnt lgkmcnt(0)")

def ffn_issue(a, cfg):
    a("s_mul_i32 s62, s2, 21846")
    a("s_lshr_b32 s62, s62, 16")
    a("s_mul_i32 s63, s62, 3")
    a("s_sub_u32 s63, s2, s63")
    a("s_cmp_ge_u32 s62, 36")
    a("s_cselect_b32 s64, 1, 0")
    a(f"s_cselect_b32 s{R_W}, s{P_WU}, s{P_WG}")
    a(f"s_cselect_b32 s{R_W+1}, s{P_WU+1}, s{P_WG+1}")
    a(f"s_mov_b32 s{R_W+2}, 5308416"); a(f"s_mov_b32 s{R_W+3}, 0x20000")
    a("s_mul_i32 s65, s64, 36")
    a("s_sub_u32 s62, s62, s65")
    w_voff(a, 14, 48, 9216)
    a(f"s_mul_i32 s66, s63, {192*9216}")
    a("s_lshl_b32 s65, s62, 8")
    a("s_add_u32 s66, s66, s65")
    return w_burst(a, cfg, 14, 6, 56, "s66", 8, 9216, WR, 48)

def ffn_compute(a, cfg):
    a_addr(a, 15, 576, 48)
    a(f"s_mul_i32 s65, s63, {192*4}")
    a("v_add_u32 v15, s65, v15")
    for k in range(9):
        a(f"ds_read_b128 {v4(XV+4*k)}, v15 offset:{L_XD + 16*k}")
    d_off(a, 14, 4608 * 8, 8)
    a("s_mul_i32 s64, s64, 3"); a("s_add_u32 s64, s64, s63"); a(f"s_mul_i32 s64, s64, {2*4608*8}")
    a("s_lshl_b32 s62, s62, 10"); a("s_add_u32 s64, s64, s62"); a(f"s_add_u32 s64, s64, {WS_GP}")
    a("s_waitcnt vmcnt(0) lgkmcnt(0)")
    gemv_mfma(a, XV, WR, 36, ACC, True)
    for k in range(3):
        a(f"ds_read_b128 {v4(XV+4*k)}, v15 offset:{L_XD + 144 + 16*k}")
    a("s_waitcnt lgkmcnt(0)")
    gemv_mfma(a, XV, WR + 144, 12, ACC, False)
    tag_pack(a, ACC, 20)
    a(f"buffer_store_dwordx4 v[20:23], v14, {q(R_WS)}, s64 offen sc1")
    a(f"buffer_store_dwordx4 v[24:27], v14, {q(R_WS)}, s64 offen offset:16 sc1")

def out_w_issue(a, cfg, ptr, nbytes, rows, wr):
    rpk = rows // 4
    srd(a, R_W, ptr, nbytes)
    w_voff(a, 13, rpk, 1152)
    a(f"s_mul_i32 s62, {S_R}, {rows*1152}")
    a(f"s_mul_i32 s63, {S_S}, 144")
    a("s_add_u32 s62, s62, s63")
    iss = w_burst(a, cfg, 13, 1, 0, "s62", rpk // 4, 1152, wr, rpk)
    exec9(a)
    iss()
    execall(a)

def out_addr(a, base):
    d_off(a, 14, 32 * 288)
    a(f"s_mul_i32 s62, {S_S}, {2*32*288}"); a(f"s_mul_i32 s63, {S_R}, 288"); a("s_add_u32 s62, s62, s63")
    a(f"s_add_u32 s62, s62, {base}")
def out_store(a, data, soff="s62"):
    exec9(a)
    a(f"buffer_store_dwordx4 {v4(data)}, v14, {q(R_WS)}, {soff} offen sc1")
    execall(a)

WD = 112
def ffn_consume(a, cfg):
    a("v_lshrrev_b32 v14, 5, v1"); a(f"v_mul_u32_u24 v14, {4608*8}, v14")
    a("v_and_b32 v7, 31, v1"); a("v_lshl_add_u32 v14, v7, 4, v14")
    a(f"s_mul_i32 s62, {S_R}, {144*8}")
    for m in range(6): a(f"s_add_u32 s{SO+m}, s62, {WS_GP + m*2*4608*8}")
    G = 28
    def issue():
        for m in range(6):
            for k in range(2):
                a(f"buffer_load_dwordx4 {v4(G+12*m+4*k)}, v14, {q(R_WS)}, s{SO+m} offen offset:{k*512} sc1")
        a("s_mov_b32 exec_lo, 0xff"); a("s_mov_b32 exec_hi, 0xff")
        for m in range(6):
            a(f"buffer_load_dwordx4 {v4(G+12*m+8)}, v14, {q(R_WS)}, s{SO+m} offen offset:1024 sc1")
        execall(a)
    def check():
        tag_check(a, [G + 12 * m + 8 for m in range(6)])
        a("v_and_b32 v11, 24, v1"); a("v_cmp_eq_u32 vcc, 0, v11"); a("v_cndmask_b32 v11, 0, v8, vcc")
        tag_check(a, [G + 12 * m + 4 * k for m in range(6) for k in range(2)])
        a("v_or_b32 v8, v8, v11")
    poll(a, issue, check, BAD_TAG, sleep=32)
    idx = [0, 2, 4, 6, 8, 10]
    for i in idx:
        a(f"v_add_f32 v{G+i}, v{G+i}, v{G+12+i}"); a(f"v_add_f32 v{G+i}, v{G+i}, v{G+24+i}")
        a(f"v_add_f32 v{G+36+i}, v{G+36+i}, v{G+48+i}"); a(f"v_add_f32 v{G+36+i}, v{G+36+i}, v{G+60+i}")
    for i in idx: rne2(a, G + i, G + 36 + i, 8 + (i // 2) % 2)
    T = G + 12
    for i in idx: a(f"v_mul_f32 v{T+i}, {S_LOG2E}, v{G+i}")
    for i in idx: a(f"v_exp_f32 v{T+i}, -v{T+i}")
    for i in idx: a(f"v_add_f32 v{T+i}, 1.0, v{T+i}")
    for i in idx: a(f"v_rcp_f32 v{T+i}, v{T+i}")
    for i in idx: a(f"v_mul_f32 v{G+i}, v{G+i}, v{T+i}")
    for i in idx: rne(a, G + i)
    for i in idx: a(f"v_mul_f32 v{G+i}, v{G+i}, v{G+36+i}")
    for n, i in enumerate(idx): a(f"v_cvt_pk_bf16_f32 v{T+n}, v{G+i}, v{G+i}")
    a("v_lshrrev_b32 v14, 5, v1"); a("v_lshlrev_b32 v14, 10, v14")
    a("v_and_b32 v7, 31, v1"); a("v_lshl_add_u32 v14, v7, 3, v14")
    for k in range(3):
        a(f"ds_write_b64 v14, {v2(T+2*k)} offset:{L_HD+256*k}")
    a_addr(a, 15, 256, 36)
    a("s_waitcnt lgkmcnt(0)")
    for k in range(9):
        a(f"ds_read_b128 {v4(XV+4*k)}, v15 offset:{L_HD + 16*k}")
    out_addr(a, WS_S3)
    a("s_waitcnt lgkmcnt(0)")
    gemv_mfma(a, XV, WD, 36, ACC, True)
    canon(a, ACC, 4)
    out_store(a, ACC)

WO = 128
def hop1_pre(a):
    a("v_lshrrev_b32 v12, 5, v1"); a("v_lshlrev_b32 v13, 6, v12"); a("v_lshlrev_b32 v12, 12, v12")
    a("v_and_b32 v7, 31, v1"); a("v_lshl_add_u32 v12, v7, 4, v12")
    a(f"s_lshl_b32 s{SO}, {S_R}, 14"); a(f"s_add_u32 s{SO}, s{SO}, {WS_S1}"); a(f"s_add_u32 s{SO+1}, s{SO}, 8192")
    a_addr(a, 15, 128, 32)
    out_addr(a, WS_S2)
def hop1_consume(a, cfg):
    O = 28; ML = 60
    def issue():
        for k in range(4):
            a(f"buffer_load_dwordx4 {v4(ML+4*k)}, v13, {q(R_WS)}, s{SO+1} offen offset:{k*16} sc1")
        for j in range(8):
            a(f"buffer_load_dwordx4 {v4(O+4*j)}, v12, {q(R_WS)}, s{SO} offen offset:{j*512} sc1")
    poll(a, issue, lambda: sent_check(a, range(O, O + 48)), BAD_SENT)
    stamp(a, cfg, 6)
    a(f"v_max3_f32 v8, v{ML}, v{ML+2}, v{ML+4}")
    a(f"v_max3_f32 v9, v{ML+6}, v{ML+8}, v{ML+10}")
    a(f"v_max3_f32 v8, v8, v{ML+12}, v{ML+14}")
    a("v_max_f32 v8, v8, v9")
    for j in range(8): a(f"v_sub_f32 v{ML+2*j}, v{ML+2*j}, v8")
    for j in range(8): a(f"v_exp_f32 v{ML+2*j}, v{ML+2*j}")
    a(f"v_mul_f32 v9, v{ML}, v{ML+1}")
    for j in range(1, 8): a(f"v_fmac_f32 v9, v{ML+2*j}, v{ML+2*j+1}")
    a("v_rcp_f32 v9, v9")
    for i in range(4): a(f"v_mul_f32 v{O+i}, v{O+i}, v{ML}")
    for j in range(1, 8):
        for i in range(4): a(f"v_fmac_f32 v{O+i}, v{O+4*j+i}, v{ML+2*j}")
    for i in range(4): a(f"v_mul_f32 v{O+i}, v{O+i}, v9")
    for i in range(4): a(f"v_cvt_pk_bf16_f32 v{O+i}, v{O+i}, v{O+i}")
    a(f"ds_write_b128 v6, {v4(O)} offset:{L_OD}")
    a("s_waitcnt lgkmcnt(0)")
    for k in range(8):
        a(f"ds_read_b128 {v4(XV+4*k)}, v15 offset:{L_OD + 16*k}")
    a("s_waitcnt lgkmcnt(0)")
    gemv_mfma(a, XV, WO, 32, ACC, True)
    canon(a, ACC, 4)
    out_store(a, ACC)

def sum_pre(a, base):
    a("v_lshrrev_b32 v14, 5, v1"); a("v_mul_u32_u24 v14, 288, v14")
    a("v_and_b32 v7, 31, v1"); a("v_lshl_add_u32 v14, v7, 4, v14")
    a(f"s_lshl_b32 s62, {S_S}, 1"); a(f"s_add_u32 s62, s62, {S_R}"); a(f"s_mul_i32 s62, s62, {32*288}")
    for k in range(3): a(f"s_add_u32 s{SO+k}, s62, {base + k*7*576}")
def sum_slots(a, cfg, T, res, sleep=0):
    def m18():
        a("s_mov_b32 exec_lo, 0x3ffff"); a("s_mov_b32 exec_hi, 0x3ffff")
    def issue():
        m18()
        for k in range(16):
            a(f"buffer_load_dwordx4 {v4(T+4*k)}, v14, {q(R_WS)}, s{SO+k//7} offen offset:{(k%7)*576} sc1")
        execall(a)
    poll(a, issue, lambda: sent_check(a, range(T, T + 64)), BAD_SENT, mask=m18, sleep=sleep)
    for step in (8, 4, 2, 1):
        for k in range(step):
            for i in range(4):
                a(f"v_add_f32 v{T+4*k+i}, v{T+4*k+i}, v{T+4*(k+step)+i}")
    for i in range(4): a(f"v_mov_b32 v{res+i}, v{T+i}")
    for i in range(4): a(f"v_permlane32_swap_b32 v{res+i}, v{T+i}")
    for i in range(4): a(f"v_add_f32 v{res+i}, v{res+i}, v{T+i}")
    rne2(a, res, res + 1, 8); rne2(a, res + 2, res + 3, 9)

def final_x(a, X):
    a(f"s_mul_i32 s66, {S_R}, 1152"); a(f"s_mul_i32 s63, {S_S}, 144"); a("s_add_u32 s66, s66, s63")
    a(f"v_lshlrev_b32 v{X+4}, 3, v1")
    a("s_mov_b64 exec, 0x3ffff")
    a(f"buffer_load_dwordx2 v[8:9], v{X+4}, {q(R_X)}, s66 offen")
    execall(a)
    a("s_waitcnt vmcnt(0)")
    a(f"v_lshlrev_b32 v{X}, 16, v8"); a(f"v_and_b32 v{X+1}, 0xffff0000, v8")
    a(f"v_lshlrev_b32 v{X+2}, 16, v9"); a(f"v_and_b32 v{X+3}, 0xffff0000, v9")
    srd(a, R_X, P_OUT, 2304)

def final_out(a, FF, AT, X):
    for i in range(4): a(f"v_add_f32 v{10+i}, v{X+i}, v{AT+i}")
    rne2(a, 10, 11, 8); rne2(a, 12, 13, 9)
    for i in range(4): a(f"v_add_f32 v{10+i}, v{10+i}, v{FF+i}")
    a("v_cvt_pk_bf16_f32 v8, v10, v11"); a("v_cvt_pk_bf16_f32 v9, v12, v13")
    a("s_mov_b64 exec, 0x3ffff")
    a(f"buffer_store_dwordx2 v[8:9], v{X+4}, {q(R_X)}, s66 offen")
    execall(a)

def s1_addr(a, vo, s1, s2):
    d_off(a, vo, 16384)
    a(f"s_lshl_b32 s60, {S_C}, 15"); a(f"s_add_u32 s60, s60, {WS_S1}")
    a(f"s_lshl_b32 {s1}, {S_B}, 12"); a(f"s_lshl_b32 s61, {S_J}, 9"); a(f"s_add_u32 {s1}, {s1}, s61"); a(f"s_add_u32 {s1}, {s1}, s60")
    a(f"s_lshl_b32 {s2}, {S_B}, 6"); a(f"s_lshl_b32 s61, {S_J}, 3"); a(f"s_add_u32 {s2}, {s2}, s61"); a(f"s_add_u32 {s2}, {s2}, s60")
    a(f"s_add_u32 {s2}, {s2}, 8192")
def s1_store(a, vo, s1, s2, O, ML):
    a(f"buffer_store_dwordx4 {v4(O)}, v{vo}, {q(R_WS)}, {s1} offen sc1")
    a("s_mov_b32 exec_lo, 1"); a("s_mov_b32 exec_hi, 1")
    a(f"buffer_store_dwordx2 {v2(ML)}, v{vo}, {q(R_WS)}, {s2} offen sc1")
    execall(a)

def wg_merge(a, cfg):
    N = cfg.NSW
    O = 28; ML = 28 + 4 * N
    for w in range(N): a(f"ds_read_b64 {v2(ML+2*w)}, v10 offset:{L_PML+16*w}")
    for w in range(N): a(f"ds_read_b128 {v4(O+4*w)}, v6 offset:{L_PART+1024*w}")
    a(f"s_waitcnt lgkmcnt({N})")
    a(f"v_max_f32 v8, v{ML}, v{ML+2}")
    for w in range(2, N): a(f"v_max_f32 v8, v8, v{ML+2*w}")
    for w in range(N): a(f"v_sub_f32 v{ML+2*w}, v{ML+2*w}, v8")
    for w in range(N): a(f"v_exp_f32 v{ML+2*w}, v{ML+2*w}")
    a(f"v_mul_f32 v9, v{ML}, v{ML+1}")
    for w in range(1, N): a(f"v_fmac_f32 v9, v{ML+2*w}, v{ML+2*w+1}")
    a("s_waitcnt lgkmcnt(0)")
    for i in range(4): a(f"v_mul_f32 v{O+i}, v{O+i}, v{ML}")
    for w in range(1, N):
        for i in range(4): a(f"v_fmac_f32 v{O+i}, v{O+4*w+i}, v{ML+2*w}")
    canon(a, O, 4); canon(a, 8, 2)
    s1_store(a, 11, "s64", "s65", O, 8)

def clears(a, cfg):
    for i in range(4): a(f"v_mov_b32 v{16+i}, -1")
    s1_addr(a, 11, "s64", "s65")
    out_addr(a, WS_S2)
    a(f"s_add_u32 s63, s62, {WS_S3 - WS_S2}")
    s1_store(a, 11, "s64", "s65", 16, 16)
    exec9(a)
    a(f"buffer_store_dwordx4 v[16:19], v14, {q(R_WS)}, s62 offen sc1")
    a(f"buffer_store_dwordx4 v[16:19], v14, {q(R_WS)}, s63 offen sc1")
    execall(a)
    a("v_mov_b32 v13, 0")
    a(f"s_cmp_lg_u32 {S_J}, 0"); a("s_cbranch_scc1 L_zt")
    a(f"s_lshl_b32 s62, {S_G}, 12"); a(f"s_add_u32 s62, s62, {WS_TICK}")
    a("s_mov_b64 exec, 1")
    a(f"buffer_store_dword v13, v13, {q(R_WS)}, s62 offen sc1")
    execall(a)
    a.label("L_zt")
    a("v_mov_b32 v20, 0"); a(f"v_mov_b32 v21, {S_TA}"); a("v_mov_b32 v22, 0"); a(f"v_mov_b32 v23, {S_TB}")
    a("s_lshl_b32 s62, s2, 4"); a(f"s_add_u32 s62, s62, {WS_CL}")
    a("s_waitcnt vmcnt(0)")
    a("s_mov_b64 exec, 1")
    a(f"buffer_store_dwordx4 v[20:23], v13, {q(R_WS)}, s62 offen sc1")
    execall(a)

def cl_wait(a, cfg):
    a("v_lshlrev_b32 v14, 4, v1")
    a(f"s_mov_b32 s62, {WS_CL}")
    G = 28
    def issue():
        for k in range(4):
            a(f"buffer_load_dwordx4 {v4(G+4*k)}, v14, {q(R_WS)}, s62 offen offset:{k*1024} sc1")
    poll(a, issue, lambda: tag_check(a, [G + 4 * k for k in range(4)]), BAD_TAG, sleep=32)

BUF = 64
def stream_loads(a, cfg, s):
    r = BUF + 32 * s
    for i in range(4):
        a(f"buffer_load_dwordx4 {v4(r+4*i)}, v6, {q(R_K)}, s70 offen offset:{i*1024} {cfg.POL}")
    for i in range(4):
        a(f"buffer_load_dwordx4 {v4(r+16+4*i)}, v7, {q(R_V)}, s70 offen offset:{i*1024} {cfg.POL}")

def stream_compute(a, cfg, s, mid1=None):
    r = BUF + 32 * s
    K = [r + 4 * i for i in range(4)]; V = [r + 16 + 4 * i for i in range(4)]
    D0, D1 = 28, 32
    a(f"v_mfma_f32_16x16x32_bf16 {v4(D0)}, {v4(K[0])}, v[8:11], 0")
    a(f"v_mfma_f32_16x16x32_bf16 {v4(D1)}, {v4(K[2])}, v[8:11], 0")
    a(f"v_mfma_f32_16x16x32_bf16 {v4(D0)}, {v4(K[1])}, v[12:15], {v4(D0)}")
    a(f"v_mfma_f32_16x16x32_bf16 {v4(D1)}, {v4(K[3])}, v[12:15], {v4(D1)}")
    if mid1: mid1()
    a(f"v_mov_b32_dpp v36, v{D0} quad_perm:[0,0,0,0] {DP}")
    a(f"v_mov_b32_dpp v37, v{D1} quad_perm:[0,0,0,0] {DP}")
    a(f"v_mov_b32_dpp v38, v{D0+2} quad_perm:[2,2,2,2] {DP}")
    a(f"v_mov_b32_dpp v39, v{D1+2} quad_perm:[2,2,2,2] {DP}")
    a(f"v_add_f32_dpp v36, v{D0+1}, v36 quad_perm:[1,1,1,1] {DP}")
    a(f"v_add_f32_dpp v37, v{D1+1}, v37 quad_perm:[1,1,1,1] {DP}")
    a(f"v_add_f32_dpp v38, v{D0+3}, v38 quad_perm:[3,3,3,3] {DP}")
    a(f"v_add_f32_dpp v39, v{D1+3}, v39 quad_perm:[3,3,3,3] {DP}")
    a("v_add_f32 v36, v36, v38"); a("v_add_f32 v37, v37, v39")
    rne2(a, 36, 37, 38)
    a(f"v_mul_f32 v36, {S_SCALE}, v36"); a(f"v_mul_f32 v37, {S_SCALE}, v37")
    rne2(a, 36, 37, 38)
    a("v_max_f32 v39, v36, v37")
    a("v_cmp_gt_f32 vcc, v39, v20")
    a(f"s_cbranch_vccz L_back{s}")
    a("s_call_b64 s[80:81], L_slow")
    a.label(f"L_back{s}")
    a(f"v_fma_f32 v36, v36, {S_LOG2E}, v26"); a(f"v_fma_f32 v37, v37, {S_LOG2E}, v26")
    a("v_exp_f32 v36, v36"); a("v_exp_f32 v37, v37")
    a("v_cvt_pk_bf16_f32 v40, v36, v36"); a("v_cvt_pk_bf16_f32 v41, v37, v37")
    a("v_add_f32 v21, v21, v36"); a("v_add_f32 v21, v21, v37")
    hm = f"row_half_mirror {DP}"
    for u, pp in ((0, 40), (1, 41)):
        A0 = 44 + 8 * u; A1 = A0 + 4
        a(f"v_and_b32 v{A0}, v{pp}, v2"); a(f"v_and_b32 v{A0+1}, v{pp}, v3")
        a(f"v_and_b32_dpp v{A0+2}, v{pp}, v4 {hm}"); a(f"v_and_b32_dpp v{A0+3}, v{pp}, v5 {hm}")
        a(f"v_and_b32_dpp v{A1}, v{pp}, v2 {hm}"); a(f"v_and_b32_dpp v{A1+1}, v{pp}, v3 {hm}")
        a(f"v_and_b32 v{A1+2}, v{pp}, v4"); a(f"v_and_b32 v{A1+3}, v{pp}, v5")
    for i in range(4):
        a(f"v_mfma_f32_16x16x32_bf16 v[16:19], {v4(44+4*i)}, {v4(V[i])}, v[16:19]")

def stream_slow(a):
    a.label("L_slow")
    a("s_nop 1")
    a("v_max_f32 v39, v39, v20")
    a(f"v_max_f32_dpp v39, v39, v39 row_half_mirror {DP}")
    a("v_mov_b32 v42, v39"); a("v_permlane16_swap_b32 v42, v39"); a("v_max_f32 v39, v39, v42")
    a("v_mov_b32 v42, v39"); a("v_permlane32_swap_b32 v42, v39"); a("v_max_f32 v20, v39, v42")
    a(f"v_mul_f32 v42, {S_LOG2E}, v20")
    a("v_add_f32 v43, v42, v26")
    a("v_exp_f32 v43, -v43")
    a("v_sub_f32 v26, 0, v42")
    a("v_mul_f32 v21, v21, v43")
    a("v_readlane_b32 s76, v43, 0"); a("v_readlane_b32 s77, v43, 8")
    a("v_mov_b32 v42, s76")
    a("s_mov_b32 exec_lo, 0")
    a("v_mov_b32 v42, s77")
    execall(a)
    for i in range(4): a(f"v_mul_f32 v{16+i}, v{16+i}, v42")
    a("s_setpc_b64 s[80:81]")

def stream_main(a, cfg):
    NS, NSS = cfg.NS, cfg.NSS
    a("v_lshlrev_b32 v7, 4, v1")
    a("v_and_b32 v6, 3, v1"); a("v_lshlrev_b32 v6, 4, v6")
    a("v_bfe_u32 v25, v1, 2, 2"); a("v_lshl_add_u32 v6, v25, 8, v6")
    a("v_lshrrev_b32 v25, 4, v1"); a("v_lshl_add_u32 v6, v25, 6, v6")
    a(f"s_lshl_b32 s71, {S_B}, 4"); a(f"s_add_u32 s71, s71, {S_C}"); a("s_lshl_b32 s71, s71, 23")
    a(f"s_mul_i32 s72, {S_J}, {cfg.NSTAT*16384}"); a("s_add_u32 s72, s72, s71")
    a(f"s_sub_u32 s73, {S_WAVE}, 2"); a("s_lshl_b32 s74, s73, 12"); a("s_add_u32 s70, s72, s74")
    a("s_waitcnt lgkmcnt(0)")
    srd(a, R_K, P_K, 0x10000000); srd(a, R_V, P_V, 0x10000000)
    a("s_barrier")
    for s in range(NS):
        if s: a(f"s_add_u32 s70, s70, {cfg.NSW*4096}")
        stream_loads(a, cfg, s)
    masks(a)
    for i in range(4): a(f"v_mov_b32 v{16+i}, 0")
    a(f"v_mov_b32 v20, {f2u(-1e30):#x}"); a(f"v_mov_b32 v26, {f2u(1.4426950408889634e30):#x}")
    a("v_mov_b32 v21, 0")
    a(f"v_mov_b32 v22, {L_CNT}"); a("v_mov_b32 v23, 1")
    a("v_bfe_u32 v25, v1, 3, 1"); a("v_lshlrev_b32 v25, 8, v25")
    a("v_lshrrev_b32 v27, 4, v1"); a("v_lshl_add_u32 v25, v27, 6, v25")
    a("v_and_b32 v27, 3, v1"); a("v_lshl_add_u32 v25, v27, 4, v25")
    a("v_and_b32 v27, 4, v1"); a("v_cmp_eq_u32 vcc, 0, v27")
    a("s_mov_b32 s78, 0")
    a.label("L_qw")
    a("ds_read_b32 v24, v22 offset:4")
    a("s_waitcnt lgkmcnt(0)")
    a("v_readfirstlane_b32 s75, v24")
    a("s_cmp_lg_u32 s75, 0"); a("s_cbranch_scc1 L_qok")
    a("s_sleep 2")
    a("s_add_u32 s78, s78, 1"); a(f"s_cmp_lt_u32 s78, {SPIN*8}"); a("s_cbranch_scc1 L_qw")
    a.label("L_qok")
    a(f"ds_read_b128 v[28:31], v25 offset:{L_QL}")
    a("s_waitcnt lgkmcnt(0)")
    for i in range(4):
        a(f"v_cndmask_b32 v{8+i}, 0, v{28+i}, vcc")
        a(f"v_cndmask_b32 v{12+i}, v{28+i}, 0, vcc")
    a("s_mov_b32 s79, 0")
    for s in range(NS - NSS):
        a(f"s_waitcnt vmcnt({8*(NS-1-s)})")
        stream_compute(a, cfg, s)
    a.fence()
    a.label("L_loop")
    for s in range(NS - NSS, NS):
        a(f"s_waitcnt vmcnt({8*(NSS-1)})")
        a("s_mov_b64 exec, 1")
        a("ds_add_rtn_u32 v24, v22, v23")
        execall(a)
        def mid1():
            a("s_waitcnt lgkmcnt(0)")
            a("v_readfirstlane_b32 s75, v24")
            a("s_min_u32 s74, s75, 2044"); a("s_and_b32 s74, s74, 0xffc")
            a("v_mov_b32 v25, s74")
            a(f"ds_read_b32 v27, v25 offset:{L_TAB}")
        stream_compute(a, cfg, s, mid1)
        a("s_cmp_lg_u32 s79, 0"); a(f"s_cbranch_scc1 L_dr{s}")
        a("s_mov_b32 s78, 0")
        a.label(f"L_poll{s}")
        a("s_waitcnt lgkmcnt(0)")
        a("v_readfirstlane_b32 s74, v27")
        a("s_cmp_lg_u32 s74, -1"); a(f"s_cbranch_scc1 L_got{s}")
        a("s_sleep 1")
        a(f"ds_read_b32 v27, v25 offset:{L_TAB}")
        a("s_add_u32 s78, s78, 1"); a(f"s_cmp_lt_u32 s78, {SPIN*8}"); a(f"s_cbranch_scc1 L_poll{s}")
        a.label(f"L_got{s}")
        a("s_cmp_ge_u32 s74, 512"); a(f"s_cbranch_scc1 L_st{s}")
        a("s_lshl_b32 s70, s74, 14"); a("s_and_b32 s75, s75, 3"); a("s_lshl_b32 s75, s75, 12")
        a("s_add_u32 s70, s70, s75"); a("s_add_u32 s70, s70, s71")
        stream_loads(a, cfg, s)
        a(f"s_branch L_nx{s}")
        a.label(f"L_st{s}")
        a(f"s_mov_b32 s79, {NSS}"); a("s_waitcnt vmcnt(0)")
        a.label(f"L_dr{s}")
        a("s_sub_u32 s79, s79, 1"); a("s_cmp_eq_u32 s79, 0"); a("s_cbranch_scc1 L_sdone")
        a.label(f"L_nx{s}")
    a("s_branch L_loop")
    stream_slow(a)
    a.label("L_sdone")
    a(f"v_add_f32_dpp v21, v21, v21 row_half_mirror {DP}")
    a("v_mov_b32 v42, v21"); a("v_permlane16_swap_b32 v42, v21"); a("v_add_f32 v21, v21, v42")
    a("v_mov_b32 v42, v21"); a("v_permlane32_swap_b32 v42, v21"); a("v_add_f32 v43, v21, v42")
    a("v_sub_f32 v42, 0, v26")
    a("s_lshl_b32 s74, s73, 10")
    a("v_add_u32 v25, s74, v7")
    a(f"ds_write_b128 v25, v[16:19] offset:{L_PART}")
    a("s_lshl_b32 s74, s73, 4")
    a("v_add_u32 v25, s74, v1")
    a("s_mov_b64 exec, 0x101")
    a(f"ds_write_b64 v25, v[42:43] offset:{L_PML}")
    execall(a)
    a("s_waitcnt lgkmcnt(0)")
    a("s_barrier")

def lds_init(a, cfg):
    assert cfg.NSTAT <= 64
    a("v_mov_b32 v8, -1"); a("v_mov_b32 v9, -1"); a("v_mov_b32 v10, -1"); a("v_mov_b32 v11, -1")
    a("v_lshlrev_b32 v12, 4, v1")
    a(f"ds_write_b128 v12, v[8:11] offset:{L_TAB}")
    a(f"ds_write_b128 v12, v[8:11] offset:{L_TAB+1024}")
    a(f"s_mul_i32 s60, {S_J}, {cfg.NSTAT}")
    a("v_add_u32 v13, s60, v1")
    a("v_lshlrev_b32 v12, 2, v1")
    m = (1 << cfg.NSTAT) - 1
    a(f"s_mov_b32 exec_lo, {m & 0xffffffff:#x}"); a(f"s_mov_b32 exec_hi, {m >> 32:#x}")
    a(f"ds_write_b32 v12, v13 offset:{L_TAB}")
    execall(a)
    a(f"v_mov_b32 v16, {cfg.NS*cfg.NSW}"); a("v_mov_b32 v17, 0"); a("v_mov_b32 v18, 0"); a("v_mov_b32 v19, 0")
    a(f"v_mov_b32 v12, {L_CNT}")
    a("ds_write_b128 v12, v[16:19]")

def scheduler(a, cfg):
    a(f"v_mov_b32 v12, {L_CNT}")
    a(f"s_lshl_b32 s62, {S_G}, 12"); a(f"s_add_u32 s62, s62, {WS_TICK}")
    a("v_mov_b32 v13, 0")
    a(f"s_mov_b32 s64, {cfg.NSTAT}")
    a(f"s_mov_b32 s66, {cfg.BIG}")
    a("s_mov_b32 s67, 0")
    a.label("L_sl")
    a("ds_read_b32 v8, v12")
    a("s_waitcnt lgkmcnt(0)")
    a("v_readfirstlane_b32 s63, v8")
    a(f"s_add_u32 s63, s63, {cfg.LOOK}")
    a("s_lshl_b32 s65, s64, 2")
    a("s_cmp_ge_u32 s63, s65"); a("s_cbranch_scc1 L_fetch")
    a("s_sleep 2")
    a("s_add_u32 s67, s67, 1"); a(f"s_cmp_lt_u32 s67, {SPIN*8}"); a("s_cbranch_scc1 L_sl")
    a.label("L_fetch")
    a("v_mov_b32 v9, s66")
    a("s_mov_b64 exec, 1")
    a(f"buffer_atomic_add v9, v13, {q(R_WS)}, s62 offen sc0")
    execall(a)
    a("v_lshl_add_u32 v11, v1, 2, s65")
    a("v_cmp_gt_u32 vcc, s66, v1")
    a("s_waitcnt vmcnt(0)")
    a("v_readfirstlane_b32 s63, v9")
    a("s_min_u32 s63, s63, 4096")
    a(f"s_add_u32 s63, s63, {8*cfg.NSTAT}")
    a("v_add_u32 v10, s63, v1")
    a("s_add_u32 s63, s63, s66")
    a("s_cmp_gt_u32 s63, 512"); a("s_cbranch_scc1 L_fin")
    a("s_mov_b64 exec, vcc")
    a(f"ds_write_b32 v11, v10 offset:{L_TAB}")
    execall(a)
    a("s_add_u32 s64, s64, s66")
    a(f"s_cmp_ge_u32 s63, {cfg.THR}"); a("s_cselect_b32 s66, 1, s66")
    a("s_branch L_sl")
    a.label("L_fin")
    a(f"ds_write_b32 v11, v10 offset:{L_TAB}")
    a("s_waitcnt lgkmcnt(0)")

def kd(name, nv=256, ns=100):
    return f""".section .rodata,"a"
.p2align 6
.amdhsa_kernel {name}
  .amdhsa_next_free_vgpr {nv}
  .amdhsa_next_free_sgpr {ns}
  .amdhsa_accum_offset {(nv+3)//4*4}
  .amdhsa_group_segment_fixed_size 0
  .amdhsa_kernarg_size 96
  .amdhsa_user_sgpr_count 2
  .amdhsa_user_sgpr_kernarg_segment_ptr 1
  .amdhsa_system_sgpr_workgroup_id_x 1
  .amdhsa_float_denorm_mode_32 3
.end_amdhsa_kernel
"""

def gen(cfg):
    assert cfg.NSTAT + (512 - 8 * cfg.NSTAT) + 64 <= 511
    assert cfg.NS * cfg.NSW <= cfg.NSTAT * 4
    a = Asm()
    nthr = (cfg.NSW + 2) * 64
    kn = NAME + "_kernel"
    a.raw(f"; @launch grid=(256,1,1) block=({nthr},1,1) lds={LDS_SIZE}")
    a.raw('.amdgcn_target "amdgcn-amd-amdhsa--gfx950"')
    a.raw(".text"); a.raw(f".globl {kn}"); a.raw(".p2align 8"); a.raw(f".type {kn},@function"); a.label(kn)
    stamp_init(a, cfg)
    stamp(a, cfg, 0)
    prologue(a, "M_end")
    a(f"s_cmp_ge_u32 {S_WAVE}, 2"); a("s_cbranch_scc1 M_stream")
    a("s_setprio 3")
    ln_addr(a)
    a(f"s_and_b32 {S_S}, {S_G}, 7")
    a(f"s_lshr_b32 {S_R}, {S_G}, 3")
    a(f"s_lshl_b32 s60, {S_J}, 2")
    a(f"s_add_u32 {S_R}, {S_R}, s60")
    a("s_waitcnt lgkmcnt(0)")
    srd(a, R_X, P_X, 2304)
    a(f"s_add_u32 s14, s{P_WS}, {WS_EPOCH}"); a(f"s_addc_u32 s15, s{P_WS+1}, 0")
    srd(a, R_WS, P_WS, WS_SIZE)
    a(f"s_cmp_eq_u32 {S_WAVE}, 1"); a("s_cbranch_scc1 M_w1a")
    iss = qproj_issue(a, cfg)
    ln_load(a); iss()
    lds_init(a, cfg)
    a("s_waitcnt lgkmcnt(0)")
    a("s_barrier")
    a(f"s_load_dwordx2 s[12:13], s[14:15], 0")
    masks(a)
    a("s_waitcnt vmcnt(18)")
    a("s_branch M_ln")
    a.label("M_w1a")
    iss = ffn_issue(a, cfg)
    ln_load(a)
    a("s_cmp_ge_u32 s2, 216"); a("s_cbranch_scc1 M_w1b")
    iss()
    a("s_barrier")
    a(f"s_load_dwordx2 s[12:13], s[14:15], 0")
    masks(a)
    a("s_waitcnt vmcnt(48)")
    a("s_branch M_ln")
    a.label("M_w1b")
    a("s_barrier")
    a(f"s_load_dwordx2 s[12:13], s[14:15], 0")
    masks(a)
    a("s_waitcnt vmcnt(0)")
    a.label("M_ln")
    stamp(a, cfg, 1)
    ln_compute(a)
    a(f"s_add_u32 {S_TA}, {S_TA}, 1"); a(f"s_add_u32 {S_TB}, {S_TB}, 0x9e3779b9")
    a(f"s_cmp_eq_u32 {S_WAVE}, 1"); a("s_cbranch_scc1 M_w1")
    qproj_compute(a, cfg)
    stamp(a, cfg, 2)
    q_gather(a, cfg)
    lds_flag_set(a, L_FLAG)
    stamp(a, cfg, 3)
    lds_flag_wait(a, L_FLAG2, 16)
    scheduler(a, cfg)
    stamp(a, cfg, 4)
    out_w_issue(a, cfg, P_WO, 4718592, 128, WO)
    hop1_pre(a)
    s1_addr(a, 11, "s64", "s65")
    a("v_lshlrev_b32 v6, 4, v1")
    a("v_lshrrev_b32 v10, 5, v1"); a("v_lshlrev_b32 v10, 3, v10")
    a("s_barrier")
    wg_merge(a, cfg)
    stamp(a, cfg, 5)
    hop1_consume(a, cfg)
    stamp(a, cfg, 7)
    stamp_flush(a, cfg, 0)
    a("s_endpgm")
    a.label("M_w1")
    a("s_cmp_ge_u32 s2, 216"); a("s_cbranch_scc1 M_w1c")
    ffn_compute(a, cfg)
    a.fence()
    a.label("M_w1c")
    stamp(a, cfg, 10)
    clears(a, cfg)
    stamp(a, cfg, 11)
    out_w_issue(a, cfg, P_WD, 5308416, 144, WD)
    cl_wait(a, cfg)
    lds_flag_set(a, L_FLAG2)
    stamp(a, cfg, 12)
    ffn_consume(a, cfg)
    stamp(a, cfg, 13)
    a(f"s_cmp_ge_u32 {S_R}, 2"); a("s_cbranch_scc1 M_w1end")
    final_x(a, 108)
    sum_pre(a, WS_S3)
    sum_slots(a, cfg, 28, 100, sleep=32)
    stamp(a, cfg, 14)
    sum_pre(a, WS_S2)
    a("s_barrier")
    sum_slots(a, cfg, 28, 104)
    final_out(a, 100, 104, 108)
    a("s_cmp_lg_u32 s2, 0"); a("s_cbranch_scc1 M_w1e2")
    a(f"v_mov_b32 v8, {S_TA}"); a(f"v_mov_b32 v9, {S_TB}"); a("v_mov_b32 v10, 0")
    a(f"s_mov_b32 s62, {WS_EPOCH}")
    a("s_mov_b64 exec, 1")
    a(f"buffer_store_dwordx2 v[8:9], v10, {q(R_WS)}, s62 offen sc1")
    execall(a)
    a.label("M_w1e2")
    stamp(a, cfg, 15)
    a.label("M_w1end")
    stamp_flush(a, cfg, 1)
    a("s_endpgm")
    a.label("M_stream")
    stream_main(a, cfg)
    a.label("M_end")
    a("s_endpgm")
    return a.text() + kd(kn)

if __name__ == "__main__":
    cfg = Cfg()
    out = sys.argv[1] if len(sys.argv) > 1 else f"cdna_kernels/{NAME}.s"
    for kv in sys.argv[2:]:
        k, v = kv.split("=")
        if k in ("POL", "WPOL"): setattr(cfg, k, v.replace("+", " "))
        else: setattr(cfg, k, int(v))
    hdr = open(f"cdna_kernels/{NAME}.s.ref").read().split("; Override launch")[0]
    open(out, "w").write(hdr + gen(cfg))
    print("wrote", out, file=sys.stderr)
```
